```python
import torch

def _softmax(x, axis=-1):
    return torch.softmax(x, dim=axis)
def _gelu(x):
    return torch.nn.functional.gelu(x, approximate="tanh")
def _silu(x):
    return torch.nn.functional.silu(x)
def _sigmoid(x):
    return torch.sigmoid(x)
def _layernorm(x, axis=-1, eps=1e-5):
    m = x.mean(dim=axis, keepdim=True)
    v = x.var(dim=axis, keepdim=True, unbiased=False)
    return (x - m) / torch.sqrt(v + eps)
def _scatter_add(tgt, idx, src, axis=0):
    return tgt.clone().index_add_(axis, idx, src)
def _segment_sum(src, seg, n):
    out = torch.zeros((n,) + src.shape[1:], dtype=src.dtype)
    return out.index_add_(0, seg, src)
def _pad(x, pw):
    flat = tuple(v for pair in reversed(pw) for v in pair)
    return torch.nn.functional.pad(x, flat)

kernel_name = 'parallel_sum__gqa_block_cached__geglu_ffn__decode'

def setup_inputs():

    _w = (lambda a: (lambda t: t.to(torch.bfloat16) if t.is_floating_point() else t)(torch.as_tensor(a)))
    def _A_setup():
        B, Sq, D = 2, 1, 640
        Hq, Hkv, Sk, Dh = 32, 32, 4096, 128
        assert Hq % Hkv == 0, (Hq, Hkv)
        return {
            "x": _w((lambda *s: torch.randn(*s, dtype=torch.bfloat16) * 0.05)(B, Sq, D)),
            "k_cache": _w((lambda *s: torch.randn(*s, dtype=torch.bfloat16) * 3.2)(B, Hkv, Sk, Dh)),
            "v_cache": _w((lambda *s: torch.randn(*s, dtype=torch.bfloat16) * 1.6)(B, Hkv, Sk, Dh)),
            "wq": _w((lambda *s: torch.randn(*s, dtype=torch.bfloat16) * 3.2)(D, Hq * Dh) * (D ** -0.5)),
            "wo": _w((lambda *s: torch.randn(*s, dtype=torch.bfloat16) * 1.6)(Hq * Dh, D) * ((Hq * Dh) ** -0.5)),
        }
    _A_in = _A_setup()

    def _B_setup():
        B, S, D, F = 2, 1, 640, 1728
        return {
            "x": _w((lambda *s: torch.randn(*s, dtype=torch.bfloat16) * 0.05)(B, S, D)),
            "w_gate": _w((lambda *s: torch.randn(*s, dtype=torch.bfloat16) * 0.05)(D, F)),
            "w_up": _w((lambda *s: torch.randn(*s, dtype=torch.bfloat16) * 0.05)(D, F)),
            "w_down": _w((lambda *s: torch.randn(*s, dtype=torch.bfloat16) * 0.05)(F, D)),
        }
    _B_in = _B_setup()

    return {
        "A_x": _A_in["x"],
        "A_k_cache": _A_in["k_cache"],
        "A_v_cache": _A_in["v_cache"],
        "A_wq": _A_in["wq"],
        "A_wo": _A_in["wo"],
        "B_x": _B_in["x"],
        "B_w_gate": _B_in["w_gate"],
        "B_w_up": _B_in["w_up"],
        "B_w_down": _B_in["w_down"],
    }

def reference(A_x, A_k_cache, A_v_cache, A_wq, A_wo, B_x, B_w_gate, B_w_up, B_w_down):
    def _A_ref(x, k_cache, v_cache, wq, wo):
        B, Sq, D = x.shape
        Hq, Dh = 32, 128
        Hkv = k_cache.shape[1]
        rep = Hq // Hkv
        q = (lambda x, *d: x.permute(*d))((x @ wq).reshape(B, Sq, Hq, Dh), 0, 2, 1, 3)
        k = (lambda x, n, axis: torch.repeat_interleave(x, n, dim=axis))(k_cache, rep, axis=1)
        v = (lambda x, n, axis: torch.repeat_interleave(x, n, dim=axis))(v_cache, rep, axis=1)
        scores = torch.einsum("bhqd,bhkd->bhqk", q, k) * (Dh ** -0.5)
        p = _softmax(scores, axis=-1)
        o = torch.einsum("bhqk,bhkd->bhqd", p, v)
        return (lambda x, *d: x.permute(*d))(o, 0, 2, 1, 3).reshape(B, Sq, Hq * Dh) @ wo

    def _B_ref(x, w_gate, w_up, w_down):
        return (_gelu(x @ w_gate) * (x @ w_up)) @ w_down

    x = A_x
    xn = _layernorm(x, axis=-1)
    return x + _A_ref(xn, A_k_cache, A_v_cache, A_wq, A_wo) + _B_ref(xn, B_w_gate, B_w_up, B_w_down)
```

```python
import sys
NAME="parallel_sum__gqa_block_cached__geglu_ffn__decode_kernel"
HDR=open("parallel_sum__gqa_block_cached__geglu_ffn__decode.s.ref").read().split("; Override launch")[0]

QP_OFF=0x0; F1_OFF=0x20000; F2_OFF=0x40000; ST_OFF=0x100000; Y_OFF=0x110000; WS_SIZE=0x200000
STAMP_OFF=0x8000000
LQ=0; LF=256; LO=512; LO_STR=544; LY=LO+8*LO_STR; LY_STR=2560; LDS_BYTES=LY+8*LY_STR
INIT_TOTAL=256+108
LOG2E=0x3fb8aa3b
SCALE=0x3db504f3

class G:
    def __init__(s): s.o=[]; s.vm=[]
    def a(s,x): s.o.append("    "+x)
    def lab(s,x): s.o.append(x+":")
    def c(s,x): s.o.append("    ; "+x)
    def vmem(s,tag,x): s.a(x); s.vm.append(tag)
    def vreset(s): s.vm=[]
    def wait(s,tag):
        i=len(s.vm)-1-s.vm[::-1].index(tag)
        n=len(s.vm)-1-i
        assert n<=63
        s.a(f"s_waitcnt vmcnt({n})")

def gen(NVPRE=8, KNT=1, WNT=1, ONT=1, stamps=0, TORDER="mix", PRIO=0):
    g=G(); a=g.a
    knt=" nt" if KNT else ""; wnt=" nt" if WNT else ""; ont=" nt" if ONT else ""
    def stamp(k):
        if stamps: a(f"s_memrealtime s[{84+2*k}:{85+2*k}]")
    DPPF="row_mask:0xf bank_mask:0xf"
    def xrow(op,v,t,steps=(16,32)):
        for st in steps:
            a(f"v_mov_b32 v{t}, v{v}"); a("s_nop 1"); a(f"v_permlane{st}_swap_b32 v{v}, v{t}"); a(f"{op} v{v}, v{v}, v{t}")
    def dpp(op,v,ctrl,nop=True):
        if nop: a("s_nop 1")
        a(f"{op}_dpp v{v}, v{v}, v{v} {ctrl} {DPPF}")
    def srd(d,p,size):
        a(f"s_mov_b32 s{d}, s{p}"); a(f"s_mov_b32 s{d+1}, s{p+1}"); a(f"s_mov_b32 s{d+2}, {size:#x}"); a(f"s_mov_b32 s{d+3}, 0x20000")
    SL=lambda i: 48+4*i
    def r4(b): return f"v[{b}:{b+3}]"
    o=g.o
    o.append(HDR.rstrip("\n"))
    o.append(f"; @launch grid=(256,1,1) block=(512,1,1) lds={LDS_BYTES}")
    o.append('.amdgcn_target "amdgcn-amd-amdhsa--gfx950"'); o.append(".text"); o.append(f".globl {NAME}"); o.append(".p2align 8"); o.append(f".type {NAME},@function"); o.append(f"{NAME}:")
    a("s_cmp_ge_u32 s2, 256"); a("s_cbranch_scc1 L_end")
    a("s_load_dwordx16 s[4:19], s[0:1], 0"); a("s_load_dwordx8 s[20:27], s[0:1], 64")
    stamp(0)
    a("v_lshrrev_b32 v3, 6, v0"); a("v_and_b32 v1, 63, v0"); a("v_readfirstlane_b32 s56, v3"); a("v_lshlrev_b32 v2, 4, v1")
    a("s_and_b32 s57, s2, 7"); a("s_lshl_b32 s57, s57, 2"); a("s_lshr_b32 s61, s2, 3"); a("s_and_b32 s62, s61, 3"); a("s_add_u32 s57, s57, s62")
    a("s_lshr_b32 s58, s2, 7")
    a("s_lshr_b32 s59, s2, 5"); a("s_and_b32 s59, s59, 3")
    a("s_lshl_b32 s60, s61, 2"); a("s_lshr_b32 s62, s2, 1"); a("s_and_b32 s62, s62, 3"); a("s_or_b32 s60, s60, s62")
    a("s_lshl_b32 s81, s58, 5"); a("s_add_u32 s81, s81, s57")
    a("s_lshl_b32 s64, s81, 20"); a("s_lshl_b32 s62, s59, 18"); a("s_add_u32 s64, s64, s62"); a("s_lshl_b32 s62, s56, 15"); a("s_add_u32 s64, s64, s62")
    for k in range(1,8): a(f"s_add_u32 s{64+k}, s64, {4096*k}")
    a("s_mov_b32 s82, 0"); a("s_mov_b32 s83, 0"); a("s_mov_b32 s63, 0")
    a("v_lshrrev_b32 v3, 4, v1"); a("v_and_b32 v4, 15, v1")
    a("s_waitcnt lgkmcnt(0)")
    srd(28,6,64<<20); srd(32,8,64<<20); srd(40,26,WS_SIZE); srd(44,24,256)
    a("s_cmp_lt_u32 s56, 2"); a("s_cbranch_scc1 L_w01")
    a("s_cmp_eq_u32 s56, 7"); a("s_cbranch_scc1 L_w7")
    g.lab("L_pref")
    g.vreset()
    def kvload(kind,i,slot):
        srdn="s[28:31]" if kind=="K" else "s[32:35]"
        g.vmem((kind,i), f"buffer_load_dwordx4 {r4(SL(slot))}, v2, {srdn}, s{64+i//4} offen offset:{(i%4)*1024}{knt}")
    for i in range(32): kvload("K",i,i)
    for i in range(NVPRE): kvload("V",i,32+i)
    def masks():
        a("v_and_b32 v36, 1, v1"); a("v_lshlrev_b32 v36, 4, v36"); a("v_mov_b32 v37, 0xffff"); a("v_lshlrev_b32 v36, v36, v37")
        a("v_bfe_u32 v37, v1, 1, 2")
        for r in range(4):
            a(f"v_cmp_eq_u32 vcc, {r}, v37"); a("s_nop 1"); a(f"v_cndmask_b32 v{6+r}, 0, v36, vcc")
    masks()
    a("v_mov_b32 v45, 0"); a("v_mov_b32 v23, 0")
    srd(36,12,4096*640*2)
    a("v_mul_u32_u24 v5, 5120, v3"); a("v_lshl_add_u32 v5, v4, 4, v5")
    a("s_lshl_b32 s72, s57, 7"); a("s_lshl_b32 s62, s56, 4"); a("s_add_u32 s72, s72, s62"); a("s_mul_i32 s72, s72, 1280"); a("s_add_u32 s73, s72, 2560")
    a("s_cmp_lg_u32 s82, 0"); a("s_cbranch_scc1 L_nobar1")
    stamp(1)
    a("s_barrier")
    g.lab("L_nobar1")
    stamp(2)
    for i in range(NVPRE,20): kvload("V",i,32+i)
    a(f"v_lshlrev_b32 v36, 4, v4"); a(f"ds_read_b128 v[10:13], v36 offset:{LQ}")
    Vs=[("V",i) for i in range(20,32)]; Os=[("O",i) for i in range(20)]
    if TORDER=="mix":
        T=[]; vi=0; oi=0
        pat="OOVOVOOV"
        for k in range(32):
            ch=pat[k%8]
            if ch=="O": T.append(Os[oi]); oi+=1
            else: T.append(Vs[vi]); vi+=1
    elif TORDER=="ofirst": T=Os+Vs
    elif TORDER=="vfirst": T=Vs+Os
    slot_of={}
    for i in range(20): slot_of[("V",i)]=32+i
    for k,t in enumerate(T): slot_of[t]=k
    def tload(k):
        t=T[k]
        if t[0]=="V": kvload("V",t[1],k)
        else:
            aa,cb=divmod(t[1],5)
            so="s72" if aa<2 else "s73"
            g.vmem(t, f"buffer_load_dwordx4 {r4(SL(k))}, v5, s[36:39], {so} offen offset:{(aa%2)*1280+cb*256}{ont}")
    a("s_mov_b32 s74, 0x%x"%SCALE); a("s_mov_b32 s75, 0xffff0000")
    a("s_waitcnt lgkmcnt(0)")
    P=28; TT=36;
    for d in range(4):
        g.wait(("K",8*d+7))
        for j in range(4):
            for t in range(8):
                src2="0" if j==0 else f"v{P+t}"
                a(f"v_dot2_f32_bf16 v{P+t}, v{SL(8*d+t)+j}, v{10+j}, {src2}")
        for h in range(2):
            b=P+4*h
            a(f"v_add_f32_dpp v{TT+2*h}, v{b}, v{b} row_ror:8 row_mask:0xf bank_mask:0x3")
            a(f"v_add_f32_dpp v{TT+2*h}, v{b+1}, v{b+1} row_ror:8 row_mask:0xf bank_mask:0xc")
            a(f"v_add_f32_dpp v{TT+2*h+1}, v{b+2}, v{b+2} row_ror:8 row_mask:0xf bank_mask:0x3")
            a(f"v_add_f32_dpp v{TT+2*h+1}, v{b+3}, v{b+3} row_ror:8 row_mask:0xf bank_mask:0xc")
        tload(8*d); tload(8*d+1)
        for h in range(2):
            a(f"v_add_f32_dpp v{TT+4+h}, v{TT+2*h}, v{TT+2*h} row_shl:4 row_mask:0xf bank_mask:0x5")
            a(f"v_add_f32_dpp v{TT+4+h}, v{TT+2*h+1}, v{TT+2*h+1} row_shr:4 row_mask:0xf bank_mask:0xa")
        tload(8*d+2); tload(8*d+3)
        for h in range(2): a(f"v_add_f32_dpp v{TT+4+h}, v{TT+4+h}, v{TT+4+h} quad_perm:[1,0,3,2] {DPPF}")
        tload(8*d+4); tload(8*d+5)
        for h in range(2): a(f"v_add_f32_dpp v{TT+4+h}, v{TT+4+h}, v{TT+4+h} quad_perm:[2,3,0,1] {DPPF}")
        tload(8*d+6); tload(8*d+7)
        a(f"v_cvt_pk_bf16_f32 v{TT}, v{TT+4}, v{TT+5}")
        a(f"v_lshlrev_b32 v{TT+1}, 16, v{TT}"); a(f"v_and_b32 v{TT+2}, s75, v{TT}")
        a(f"v_mul_f32 v{TT+1}, s74, v{TT+1}"); a(f"v_mul_f32 v{TT+2}, s74, v{TT+2}")
        a(f"v_cvt_pk_bf16_f32 v{TT}, v{TT+1}, v{TT+2}")
        a(f"v_lshlrev_b32 v{14+2*d}, 16, v{TT}"); a(f"v_and_b32 v{15+2*d}, s75, v{TT}")
    a("v_max3_f32 v36, v14, v15, v16"); a("v_max3_f32 v37, v17, v18, v19"); a("v_max3_f32 v36, v36, v20, v21"); a("v_max_f32 v36, v36, v37")
    dpp("v_max_f32",36,"row_ror:4"); dpp("v_max_f32",36,"row_ror:8"); xrow("v_max_f32",36,37)
    a("s_mov_b32 s74, 0x%x"%LOG2E)
    a("v_mul_f32 v38, s74, v36")
    for k in range(8): a(f"v_fma_f32 v{14+k}, v{14+k}, s74, -v38")
    for k in range(8): a(f"v_exp_f32 v{14+k}, v{14+k}")
    a("s_nop 0")
    a("v_add_f32 v39, v14, v15"); a("v_add_f32 v36, v16, v17"); a("v_add_f32 v39, v39, v18"); a("v_add_f32 v36, v36, v19"); a("v_add_f32 v39, v39, v20"); a("v_add_f32 v36, v36, v21"); a("v_add_f32 v39, v39, v36")
    for k in range(8): a(f"v_cvt_pk_bf16_f32 v{14+k}, v{14+k}, v{14+k}")
    dpp("v_add_f32",39,"row_ror:4",nop=False); dpp("v_add_f32",39,"row_ror:8"); xrow("v_add_f32",39,37)
    a("v_min_u32 v38, -2, v38"); a("v_min_u32 v39, -2, v39")
    a("s_lshl_b32 s61, s81, 5"); a("s_lshl_b32 s62, s59, 3"); a("s_add_u32 s61, s61, s62"); a("s_add_u32 s61, s61, s56"); a("s_lshl_b32 s61, s61, 3"); a(f"s_add_u32 s61, s61, {ST_OFF}")
    a("v_mov_b32 v36, 0")
    a("s_mov_b64 exec, 1")
    g.vmem("st","buffer_store_dwordx2 v[38:39], v36, s[40:43], s61 offen sc1")
    a("s_mov_b64 exec, -1")
    stamp(3)
    beta=[0,2,1,3]
    def buildA(i):
        A=28+4*(i%2)
        for r in range(4):
            a(f"v_and_b32_dpp v{A+r}, v{14+i//4}, v{6+r} row_newbcast:{4*beta[i%4]} {DPPF}")
    buildA(0)
    for i in range(32):
        if i<31: buildA(i+1)
        else: a("s_nop 1")
        g.wait(("V",i))
        A=28+4*(i%2)
        C="0" if i==0 else "v[24:27]"
        a(f"v_mfma_f32_16x16x32_bf16 v[24:27], {r4(A)}, {r4(SL(slot_of[('V',i)]))}, {C}")
    a("v_lshlrev_b32 v36, 5, v4"); a("v_lshl_add_u32 v36, v3, 4, v36")
    a(f"s_mul_i32 s61, s56, {LO_STR}"); a("v_add_u32 v41, s61, v36")
    a(f"s_mul_i32 s61, s56, {LY_STR}"); a("v_add_u32 v42, s61, v36")
    a("s_mov_b64 exec, 0xffffffff")
    a("s_nop 3")
    a(f"ds_write_b128 v41, v[24:27] offset:{LO}")
    a("s_mov_b64 exec, -1")
    a("v_and_b32 v36, 7, v1"); a(f"v_mul_u32_u24 v40, {LO_STR}, v36"); a("v_lshl_add_u32 v40, v3, 4, v40"); a("s_lshl_b32 s61, s56, 6"); a("v_add_u32 v40, s61, v40")
    a("s_lshl_b32 s61, s59, 5"); a("v_lshl_add_u32 v43, v36, 2, s61")
    stamp(4)
    a("s_cmp_eq_u32 s56, 2"); a("s_cbranch_scc1 L_w2stats")
    a("s_cmp_eq_u32 s56, 3"); a("s_cbranch_scc1 L_w3pre")
    g.lab("L_bar2")
    a("s_waitcnt lgkmcnt(0)")
    a("s_barrier")
    stamp(5)
    a(f"ds_read_b128 v[36:39], v40 offset:{LO}")
    a(f"ds_read_b32 v44, v43 offset:{LF}")
    a("s_waitcnt lgkmcnt(0)")
    for k in range(4): a(f"v_mul_f32 v{36+k}, v44, v{36+k}")
    for ctrl in ("quad_perm:[1,0,3,2]","quad_perm:[2,3,0,1]","row_half_mirror"):
        for k in range(4): a(f"v_add_f32_dpp v{36+k}, v{36+k}, v{36+k} {ctrl} {DPPF}")
    for k in range(4): a(f"v_cvt_pk_bf16_f32 v{36+k}, v{36+k}, v{36+k}")
    YA=SL(32)
    AB=SL(40)
    for k in range(4):
        for r in range(4): a(f"v_and_b32 v{AB+4*k+r}, v{36+k}, v{6+r}")
    a("s_waitcnt vmcnt(0)")
    a("s_nop 0")
    for aa in range(4):
        for cb in range(5):
            C="0" if aa==0 else r4(YA+4*cb)
            a(f"v_mfma_f32_16x16x32_bf16 {r4(YA+4*cb)}, {r4(AB+4*aa)}, {r4(SL(slot_of[('O',aa*5+cb)]))}, {C}")
    a("s_mov_b64 exec, 0xffffffff")
    a("s_nop 2")
    for cb in range(5):
        a(f"ds_write_b128 v42, {r4(YA+4*cb)} offset:{LY+512*cb}")
        if cb<4: a("s_nop 0")
    a("s_mov_b64 exec, -1")
    a("v_lshlrev_b32 v36, 4, v0")
    a("s_lshl_b32 s61, s58, 7"); a("s_lshl_b32 s62, s57, 2"); a("s_add_u32 s61, s61, s62"); a("s_add_u32 s61, s61, s59"); a("s_mul_i32 s61, s61, 2560"); a(f"s_add_u32 s61, s61, {Y_OFF}")
    a("s_waitcnt lgkmcnt(0)")
    a("s_barrier")
    stamp(6)
    a("s_cmp_ge_u32 s56, 3"); a("s_cbranch_scc1 L_fin")
    a("v_cmp_gt_u32 vcc, 160, v0"); a("s_and_saveexec_b64 s[76:77], vcc")
    for w in range(8): a(f"ds_read_b128 {r4(SL(w))}, v36 offset:{LY+LY_STR*w}")
    a("s_waitcnt lgkmcnt(0)" if stamps else "s_waitcnt lgkmcnt(4)")
    for k in range(2):
        a(f"v_pk_add_f32 v[{SL(0)+2*k}:{SL(0)+2*k+1}], v[{SL(0)+2*k}:{SL(0)+2*k+1}], v[{SL(1)+2*k}:{SL(1)+2*k+1}]")
        a(f"v_pk_add_f32 v[{SL(2)+2*k}:{SL(2)+2*k+1}], v[{SL(2)+2*k}:{SL(2)+2*k+1}], v[{SL(3)+2*k}:{SL(3)+2*k+1}]")
    for k in range(2):
        a(f"v_pk_add_f32 v[{SL(0)+2*k}:{SL(0)+2*k+1}], v[{SL(0)+2*k}:{SL(0)+2*k+1}], v[{SL(2)+2*k}:{SL(2)+2*k+1}]")
    a("s_waitcnt lgkmcnt(0)")
    for k in range(2):
        a(f"v_pk_add_f32 v[{SL(4)+2*k}:{SL(4)+2*k+1}], v[{SL(4)+2*k}:{SL(4)+2*k+1}], v[{SL(5)+2*k}:{SL(5)+2*k+1}]")
        a(f"v_pk_add_f32 v[{SL(6)+2*k}:{SL(6)+2*k+1}], v[{SL(6)+2*k}:{SL(6)+2*k+1}], v[{SL(7)+2*k}:{SL(7)+2*k+1}]")
    for k in range(2):
        a(f"v_pk_add_f32 v[{SL(4)+2*k}:{SL(4)+2*k+1}], v[{SL(4)+2*k}:{SL(4)+2*k+1}], v[{SL(6)+2*k}:{SL(6)+2*k+1}]")
    for k in range(2):
        a(f"v_pk_add_f32 v[{SL(0)+2*k}:{SL(0)+2*k+1}], v[{SL(0)+2*k}:{SL(0)+2*k+1}], v[{SL(4)+2*k}:{SL(4)+2*k+1}]")
    for k in range(4): a(f"v_min_u32 v{SL(0)+k}, -2, v{SL(0)+k}")
    a(f"buffer_store_dwordx4 {r4(SL(0))}, v36, s[40:43], s61 offen sc1")
    a("s_mov_b64 exec, -1")
    a("s_branch L_done")
    g.lab("L_fin")
    a("s_cmp_lg_u32 s56, 3"); a("s_cbranch_scc1 L_done")
    a("s_cmp_eq_u32 s83, 0"); a("s_cbranch_scc1 L_done")
    a("s_mov_b32 s80, 0")
    g.lab("L_fin_poll")
    a("s_mov_b32 s62, s63")
    for i in range(8):
        a(f"buffer_load_dwordx4 {r4(SL(i))}, v45, s[40:43], s62 offen sc1")
        if i<7: a("s_add_u32 s62, s62, 40960")
    a("s_waitcnt vmcnt(0)")
    def allvalid(regs,t):
        a(f"v_max3_u32 v{t}, v{regs[0]}, v{regs[1]}, v{regs[2]}")
        k=3
        while k+1<len(regs):
            a(f"v_max3_u32 v{t}, v{t}, v{regs[k]}, v{regs[k+1]}"); k+=2
        if k<len(regs): a(f"v_max_u32 v{t}, v{t}, v{regs[k]}")
        a(f"v_cmp_eq_u32 vcc, -1, v{t}")
        a("s_cmp_eq_u64 vcc, 0")
    allvalid(list(range(SL(0),SL(8))),36)
    a("s_cbranch_scc1 L_fin_ok")
    a("s_sleep 4"); a("s_add_u32 s80, s80, 1"); a("s_cmp_lt_u32 s80, 0x10000"); a("s_cbranch_scc1 L_fin_poll")
    g.lab("L_fin_ok")
    def sum_scatter(n,dst):
        for i in range(1,n):
            for k in range(2):
                a(f"v_pk_add_f32 v[{SL(0)+2*k}:{SL(0)+2*k+1}], v[{SL(0)+2*k}:{SL(0)+2*k+1}], v[{SL(i)+2*k}:{SL(i)+2*k+1}]")
        b=SL(0)
        a("s_nop 1")
        a(f"v_add_f32_dpp v36, v{b}, v{b} row_ror:8 row_mask:0xf bank_mask:0x3")
        a(f"v_add_f32_dpp v36, v{b+1}, v{b+1} row_ror:8 row_mask:0xf bank_mask:0xc")
        a(f"v_add_f32_dpp v37, v{b+2}, v{b+2} row_ror:8 row_mask:0xf bank_mask:0x3")
        a(f"v_add_f32_dpp v37, v{b+3}, v{b+3} row_ror:8 row_mask:0xf bank_mask:0xc")
        a(f"v_add_f32_dpp v{dst}, v36, v36 row_shl:4 row_mask:0xf bank_mask:0x5")
        a("s_nop 0")
        a(f"v_add_f32_dpp v{dst}, v37, v37 row_shr:4 row_mask:0xf bank_mask:0xa")
        xrow("v_add_f32",dst,36)
    sum_scatter(8,38)
    a("v_cvt_pk_bf16_f32 v38, v38, v38"); a("v_lshlrev_b32 v38, 16, v38"); a("v_add_f32 v38, v46, v38")
    a("v_cvt_pk_bf16_f32 v38, v38, v38"); a("v_lshlrev_b32 v38, 16, v38"); a("v_add_f32 v38, v47, v38")
    a("v_cvt_pk_bf16_f32 v38, v38, v38")
    srd(52,22,2560)
    a("s_mov_b64 exec, 0xffff")
    a("buffer_store_short v38, v23, s[52:55], 0 offen")
    a("s_mov_b64 exec, -1")
    g.lab("L_done")
    if stamps:
        stamp(7)
        a("s_waitcnt lgkmcnt(0)")
        a(f"s_add_u32 s52, s26, {STAMP_OFF}"); a("s_addc_u32 s53, s27, 0"); a("s_mov_b32 s54, 0x100000"); a("s_mov_b32 s55, 0x20000")
        for k in range(8): a(f"v_mov_b32 v{48+k}, s{84+2*k}")
        a("s_lshl_b32 s61, s2, 3"); a("s_add_u32 s61, s61, s56"); a("s_lshl_b32 s61, s61, 5")
        a("v_mov_b32 v36, 0"); a("s_mov_b64 exec, 1")
        a("buffer_store_dwordx4 v[48:51], v36, s[52:55], s61 offen"); a("buffer_store_dwordx4 v[52:55], v36, s[52:55], s61 offen offset:16")
    g.lab("L_end")
    a("s_endpgm")

    g.lab("L_w2stats")
    a("v_and_b32 v36, 31, v1"); a("v_lshlrev_b32 v44, 3, v36"); a("v_lshlrev_b32 v45, 2, v36")
    a("s_lshl_b32 s61, s81, 8"); a(f"s_add_u32 s61, s61, {ST_OFF}")
    a("s_mov_b32 s80, 0")
    g.lab("L_w2_poll")
    a("buffer_load_dwordx2 v[36:37], v44, s[40:43], s61 offen sc1")
    a("s_waitcnt vmcnt(0)")
    a("v_max_u32 v38, v36, v37"); a("v_cmp_eq_u32 vcc, -1, v38"); a("s_cmp_eq_u64 vcc, 0"); a("s_cbranch_scc1 L_w2_ok")
    a("s_sleep 8"); a("s_add_u32 s80, s80, 1"); a("s_cmp_lt_u32 s80, 0x10000"); a("s_cbranch_scc1 L_w2_poll")
    g.lab("L_w2_ok")
    a("v_mov_b32 v38, v36")
    for ctrl in ("quad_perm:[1,0,3,2]","quad_perm:[2,3,0,1]","row_half_mirror","row_mirror"): dpp("v_max_f32",38,ctrl)
    xrow("v_max_f32",38,39,steps=(16,))
    a("v_sub_f32 v36, v36, v38"); a("v_exp_f32 v36, v36"); a("s_nop 0"); a("v_mul_f32 v37, v36, v37")
    for ctrl in ("quad_perm:[1,0,3,2]","quad_perm:[2,3,0,1]","row_half_mirror","row_mirror"): dpp("v_add_f32",37,ctrl)
    xrow("v_add_f32",37,39,steps=(16,))
    a("v_rcp_f32 v37, v37"); a("s_nop 0"); a("v_mul_f32 v36, v36, v37")
    a(f"ds_write_b32 v45, v36 offset:{LF}")
    a("s_branch L_bar2")

    g.lab("L_w3pre")
    a("s_and_b32 s61, s2, 1"); a("s_cmp_eq_u32 s61, 0"); a("s_cbranch_scc1 L_bar2")
    a("s_cmp_ge_u32 s60, 80"); a("s_cbranch_scc1 L_bar2")
    a("s_mov_b32 s83, 1")
    a("s_cmp_ge_u32 s60, 40"); a("s_cselect_b32 s61, 1, 0"); a("s_mul_i32 s62, s61, 40"); a("s_sub_u32 s62, s60, s62")
    a("s_mul_i32 s63, s61, 327680"); a("s_lshl_b32 s74, s62, 6"); a("s_add_u32 s63, s63, s74"); a(f"s_add_u32 s63, s63, {Y_OFF}")
    a("v_lshrrev_b32 v36, 2, v1"); a("v_and_b32 v37, 3, v1")
    a("v_mul_u32_u24 v45, 2560, v36"); a("v_lshl_add_u32 v45, v37, 4, v45")
    a("v_mul_u32_u24 v44, 5120, v36"); a("v_lshl_add_u32 v44, v37, 4, v44")
    a("s_mul_i32 s75, s61, 2560"); a("s_add_u32 s75, s75, s74"); a(f"s_add_u32 s75, s75, {F2_OFF}")
    a("v_and_b32 v38, 1, v36"); a("v_lshlrev_b32 v38, 1, v38"); a("v_bfe_u32 v39, v36, 1, 1"); a("v_or_b32 v38, v38, v39")
    a("v_lshl_add_u32 v38, v37, 2, v38"); a("v_lshlrev_b32 v38, 1, v38")
    a("s_mul_i32 s61, s61, 1280"); a("s_lshl_b32 s62, s62, 5"); a("s_add_u32 s61, s61, s62"); a("v_add_u32 v23, s61, v38")
    srd(48,4,2560)
    a("buffer_load_ushort v46, v23, s[48:51], 0 offen")
    a("v_cmp_gt_u32 vcc, 12, v36"); a("v_mov_b32 v39, 0x7ffffff0"); a("s_nop 0"); a("v_cndmask_b32 v39, v39, v44, vcc")
    a("s_mov_b32 s80, 0")
    FS=32
    g.lab("L_w3_poll")
    a("s_mov_b32 s62, s75")
    for i in range(7):
        vo="v44" if i<6 else "v39"
        a(f"buffer_load_dwordx4 {r4(SL(FS+i))}, {vo}, s[40:43], s62 offen sc1")
        if i<6: a("s_add_u32 s62, s62, 81920")
    a("s_waitcnt vmcnt(0)")
    allvalid(list(range(SL(FS),SL(FS+7))),36)
    a("s_cbranch_scc1 L_w3_ok")
    a("s_sleep 8"); a("s_add_u32 s80, s80, 1"); a("s_cmp_lt_u32 s80, 0x10000"); a("s_cbranch_scc1 L_w3_poll")
    g.lab("L_w3_ok")
    SLsave=SL
    SL2=lambda i: 48+4*(FS+i)
    for i in range(1,7):
        for k in range(2):
            a(f"v_pk_add_f32 v[{SL2(0)+2*k}:{SL2(0)+2*k+1}], v[{SL2(0)+2*k}:{SL2(0)+2*k+1}], v[{SL2(i)+2*k}:{SL2(i)+2*k+1}]")
    b=SL2(0)
    a("s_nop 1")
    a(f"v_add_f32_dpp v36, v{b}, v{b} row_ror:8 row_mask:0xf bank_mask:0x3")
    a(f"v_add_f32_dpp v36, v{b+1}, v{b+1} row_ror:8 row_mask:0xf bank_mask:0xc")
    a(f"v_add_f32_dpp v37, v{b+2}, v{b+2} row_ror:8 row_mask:0xf bank_mask:0x3")
    a(f"v_add_f32_dpp v37, v{b+3}, v{b+3} row_ror:8 row_mask:0xf bank_mask:0xc")
    a(f"v_add_f32_dpp v47, v36, v36 row_shl:4 row_mask:0xf bank_mask:0x5")
    a("s_nop 0")
    a(f"v_add_f32_dpp v47, v37, v37 row_shr:4 row_mask:0xf bank_mask:0xa")
    xrow("v_add_f32",47,36)
    a("v_cvt_pk_bf16_f32 v47, v47, v47"); a("v_lshlrev_b32 v47, 16, v47"); a("v_lshlrev_b32 v46, 16, v46")
    a("s_branch L_bar2")

    g.lab("L_w7")
    a("v_mov_b32 v48, -1"); a("v_mov_b32 v49, -1"); a("v_mov_b32 v50, -1"); a("v_mov_b32 v51, -1")
    a("s_lshl_b32 s61, s58, 7"); a("s_lshl_b32 s62, s57, 2"); a("s_add_u32 s61, s61, s62"); a("s_add_u32 s61, s61, s59"); a("s_mul_i32 s61, s61, 2560"); a(f"s_add_u32 s61, s61, {Y_OFF}")
    a("buffer_store_dwordx4 v[48:51], v2, s[40:43], s61 offen sc1")
    a("buffer_store_dwordx4 v[48:51], v2, s[40:43], s61 offen offset:1024 sc1")
    a("s_mov_b64 exec, 0xffffffff")
    a("buffer_store_dwordx4 v[48:51], v2, s[40:43], s61 offen offset:2048 sc1")
    a("s_lshl_b32 s61, s81, 8"); a("s_lshl_b32 s62, s59, 6"); a("s_add_u32 s61, s61, s62"); a(f"s_add_u32 s61, s61, {ST_OFF}")
    a("s_mov_b64 exec, 0xf")
    a("buffer_store_dwordx4 v[48:51], v2, s[40:43], s61 offen sc1")
    a("s_mov_b64 exec, 1")
    a("v_mov_b32 v52, 1"); a("v_mov_b32 v53, 240")
    a("s_waitcnt vmcnt(0)")
    a("buffer_atomic_add v52, v53, s[44:47], 0 offen sc1")
    a("s_mov_b64 exec, -1")
    a("s_branch L_pref")

    g.lab("L_w01")
    a("s_and_b32 s61, s2, 1"); a("s_cmp_eq_u32 s61, 0"); a("s_cbranch_scc1 L_even01")
    a("s_cmp_eq_u32 s56, 0"); a("s_cbranch_scc1 L_w0_poll0")
    a("s_branch L_pref")
    g.lab("L_even01")
    a("s_and_b32 s63, s60, 3"); a("s_lshr_b32 s74, s60, 2")
    a("s_cmp_eq_u32 s56, 0"); a("s_cbranch_scc1 L_w0_addr")
    a("s_cmp_ge_u32 s60, 108"); a("s_cbranch_scc1 L_pref")
    a("v_mov_b32 v48, -1"); a("v_mov_b32 v49, -1"); a("v_mov_b32 v50, -1"); a("v_mov_b32 v51, -1")
    a("s_mul_i32 s61, s60, 5120"); a(f"s_add_u32 s61, s61, {F2_OFF}"); a("s_add_u32 s62, s61, 4096")
    for k in range(4): a(f"buffer_store_dwordx4 v[48:51], v2, s[40:43], s61 offen offset:{1024*k} sc1")
    a("buffer_store_dwordx4 v[48:51], v2, s[40:43], s62 offen sc1")
    a("v_and_b32 v36, 8, v1"); a("v_cmp_eq_u32 vcc, 0, v36")
    a("v_mov_b32 v36, s18"); a("v_mov_b32 v37, s16"); a("v_cndmask_b32 v10, v36, v37, vcc")
    a("v_mov_b32 v36, s19"); a("v_mov_b32 v37, s17"); a("v_cndmask_b32 v11, v36, v37, vcc")
    a("s_mul_i32 s61, s63, 552960"); a("s_lshl_b32 s62, s74, 7"); a("s_add_u32 s61, s61, s62")
    a("s_mov_b32 s62, 138240"); a("v_mul_lo_u32 v36, v3, s62"); a("v_and_b32 v37, 7, v1"); a("v_lshl_add_u32 v36, v37, 4, v36"); a("v_add_u32 v36, s61, v36")
    a("s_mov_b32 s78, 3456"); a("s_mov_b32 s79, 0")
    a("s_lshl_b32 s75, s60, 10"); a(f"s_add_u32 s75, s75, {F1_OFF}")
    a("s_branch L_unit")
    g.lab("L_w0_addr")
    a("v_mov_b32 v10, s10"); a("v_mov_b32 v11, s11")
    a("s_mul_i32 s61, s63, 1310720"); a("s_lshl_b32 s62, s74, 8"); a("s_add_u32 s61, s61, s62")
    a("s_mov_b32 s62, 327680"); a("v_mul_lo_u32 v36, v3, s62"); a("v_lshl_add_u32 v36, v4, 4, v36"); a("v_add_u32 v36, s61, v36")
    a("s_mov_b32 s78, 8192"); a("s_mov_b32 s79, 0")
    a("s_lshl_b32 s75, s60, 10"); a(f"s_add_u32 s75, s75, {QP_OFF}")
    g.lab("L_unit")
    g.vreset()
    srd(48,4,2560)
    a("v_mov_b32 v37, 0"); a("v_lshl_add_u64 v[10:11], v[36:37], 0, v[10:11]")
    a("v_bfe_u32 v36, v1, 3, 1"); a("v_mul_u32_u24 v36, 1280, v36")
    a("v_and_b32 v37, 7, v1"); a("v_lshl_add_u32 v37, v3, 3, v37"); a("v_lshl_add_u32 v37, v37, 3, v36")
    for k in range(5): g.vmem(("xs",k),f"buffer_load_dwordx2 v[{14+2*k}:{15+2*k}], v37, s[48:51], 0 offen offset:{256*k}")
    a("v_mul_u32_u24 v12, 80, v3"); a("v_add_u32 v12, v12, v36"); a("s_mul_i32 s61, s63, 320")
    for k in range(5): g.vmem(("xc",k),f"buffer_load_dwordx4 {r4(28+4*k)}, v12, s[48:51], s61 offen offset:{16*k}")
    for i in range(40):
        g.vmem(("w",i),f"global_load_dwordx4 {r4(SL(i))}, v[10:11], off{wnt}")
        if i<39: a("v_lshl_add_u64 v[10:11], v[10:11], 0, s[78:79]")
    a("v_and_b32 v12, 1, v1"); a("v_lshlrev_b32 v12, 4, v12"); a("v_mov_b32 v13, 0xffff"); a("v_lshlrev_b32 v12, v12, v13")
    a("v_bfe_u32 v13, v1, 1, 2")
    for r in range(4):
        a(f"v_cmp_eq_u32 vcc, {r}, v13"); a("s_nop 1"); a(f"v_cndmask_b32 v{6+r}, 0, v12, vcc")
    a("s_mov_b32 s61, 0xffff0000")
    g.wait(("xs",4))
    U=208
    for k in range(10):
        a(f"v_lshlrev_b32 v{U+2*k}, 16, v{14+k}"); a(f"v_and_b32 v{U+2*k+1}, s61, v{14+k}")
    a(f"v_add_f32 v12, v{U}, v{U+1}"); a(f"v_add_f32 v13, v{U+2}, v{U+3}")
    for k in range(4,20,2):
        a(f"v_add_f32 v12, v12, v{U+k}"); a(f"v_add_f32 v13, v13, v{U+k+1}")
    a("v_add_f32 v12, v12, v13")
    def red32(v,t):
        for ctrl in ("quad_perm:[1,0,3,2]","quad_perm:[2,3,0,1]","row_half_mirror"): dpp("v_add_f32",v,ctrl)
        xrow("v_add_f32",v,t)
    red32(12,13)
    a("s_mov_b32 s62, 0x3acccccd")
    a("v_mul_f32 v12, s62, v12")
    for k in range(20): a(f"v_sub_f32 v{U+k}, v{U+k}, v12")
    a(f"v_mul_f32 v14, v{U}, v{U}"); a(f"v_mul_f32 v15, v{U+1}, v{U+1}")
    for k in range(2,20,2):
        a(f"v_fmac_f32 v14, v{U+k}, v{U+k}"); a(f"v_fmac_f32 v15, v{U+k+1}, v{U+k+1}")
    a("v_add_f32 v14, v14, v15")
    red32(14,13)
    a("v_mul_f32 v14, s62, v14")
    a("v_cvt_pk_bf16_f32 v13, v12, v14"); a("v_lshlrev_b32 v12, 16, v13"); a("v_and_b32 v14, s61, v13")
    a("v_add_f32 v14, 0x3727c5ac, v14"); a("v_cvt_pk_bf16_f32 v14, v14, v14"); a("v_and_b32 v14, s61, v14")
    a("v_sqrt_f32 v14, v14"); a("s_nop 0"); a("v_cvt_pk_bf16_f32 v14, v14, v14"); a("v_and_b32 v14, s61, v14")
    a("v_rcp_f32 v14, v14")
    g.wait(("xc",4))
    for k in range(20):
        a(f"v_lshlrev_b32 v16, 16, v{28+k}"); a(f"v_and_b32 v17, s61, v{28+k}")
        a("v_sub_f32 v16, v16, v12"); a("v_sub_f32 v17, v17, v12")
        a("v_cvt_pk_bf16_f32 v18, v16, v17")
        a("v_lshlrev_b32 v16, 16, v18"); a("v_and_b32 v17, s61, v18")
        a("v_mul_f32 v16, v16, v14"); a("v_mul_f32 v17, v17, v14")
        a(f"v_cvt_pk_bf16_f32 v{U+2*k}, v16, v16"); a(f"v_cvt_pk_bf16_f32 v{U+2*k+1}, v17, v17")
    def buildX(i):
        A=248+4*(i%2)
        for r in range(4): a(f"v_and_b32 v{A+r}, v{U+i}, v{6+r}")
    buildX(0)
    for i in range(40):
        if i<39: buildX(i+1)
        else: a("s_nop 1")
        g.wait(("w",i))
        C="0" if i==0 else "v[24:27]"
        a(f"v_mfma_f32_16x16x32_bf16 v[24:27], {r4(248+4*(i%2))}, {r4(SL(i))}, {C}")
    a("v_lshrrev_b32 v12, 1, v3"); a("v_lshlrev_b32 v12, 9, v12"); a("v_lshl_add_u32 v12, v4, 5, v12"); a("v_and_b32 v13, 1, v3"); a("v_lshl_add_u32 v12, v13, 4, v12")
    a("s_nop 3")
    a("buffer_store_dwordx4 v[24:27], v12, s[40:43], s75 offen sc1")
    a("v_mov_b32 v14, 1"); a("v_mov_b32 v15, s60")
    a("s_cmp_eq_u32 s56, 1"); a("s_cbranch_scc1 L_w1_ffn2")
    a("s_mov_b64 exec, 1")
    a("s_waitcnt vmcnt(0)")
    a("buffer_store_byte v14, v15, s[44:47], 0 offen sc1")
    a("s_mov_b64 exec, -1")
    g.lab("L_w0_poll0")
    a("s_lshl_b32 s61, s57, 2"); a("v_mov_b32 v14, s61"); a("v_mov_b32 v15, 0x01010101")
    a("v_cmp_eq_u32 vcc, 1, v1"); a("v_mov_b32 v16, 240"); a(f"v_mov_b32 v17, {INIT_TOTAL}")
    a("v_cndmask_b32 v14, v14, v16, vcc"); a("v_cndmask_b32 v15, v15, v17, vcc")
    a("v_lshlrev_b32 v18, 3, v1"); a("v_lshlrev_b32 v19, 2, v1")
    a("s_lshl_b32 s61, s57, 12"); a("s_lshl_b32 s62, s58, 9"); a("s_add_u32 s61, s61, s62"); a(f"s_add_u32 s61, s61, {QP_OFF}")
    a("s_mov_b32 s80, 0")
    a("s_mov_b64 exec, 3")
    g.lab("L_w0_poll")
    a("buffer_load_dword v16, v14, s[44:47], 0 offen sc1")
    a("s_waitcnt vmcnt(0)")
    a("v_cmp_ne_u32 vcc, v16, v15"); a("s_cmp_eq_u64 vcc, 0"); a("s_cbranch_scc1 L_w0_ok")
    a("s_sleep 2"); a("s_add_u32 s80, s80, 1"); a("s_cmp_lt_u32 s80, 0x10000"); a("s_cbranch_scc1 L_w0_poll")
    g.lab("L_w0_ok")
    a("s_mov_b64 exec, -1")
    for k in range(4): a(f"buffer_load_dwordx2 v[{28+2*k}:{29+2*k}], v18, s[40:43], s61 offen offset:{1024*k} sc1")
    a("s_waitcnt vmcnt(0)")
    a("v_pk_add_f32 v[28:29], v[28:29], v[30:31]"); a("v_pk_add_f32 v[32:33], v[32:33], v[34:35]"); a("v_pk_add_f32 v[28:29], v[28:29], v[32:33]")
    a("v_cvt_pk_bf16_f32 v28, v28, v29")
    a(f"ds_write_b32 v19, v28 offset:{LQ}")
    a("s_waitcnt lgkmcnt(0)")
    stamp(1)
    a("s_barrier")
    a("s_mov_b32 s82, 1")
    a("s_branch L_pref")
    g.lab("L_w1_ffn2")
    srd(52,20,1728*640*2)
    a("v_mul_u32_u24 v5, 5120, v3"); a("v_lshl_add_u32 v5, v4, 4, v5")
    a("s_mul_i32 s72, s60, 20480"); a("s_add_u32 s73, s72, 2560")
    for t in range(20):
        aa,cb=divmod(t,5)
        so="s72" if aa<2 else "s73"
        a(f"buffer_load_dwordx4 {r4(SL(t))}, v5, s[52:55], {so} offen offset:{(aa%2)*1280+cb*256}{wnt}")
    a("v_add_u32 v15, 128, v15"); a("v_mov_b32 v16, 240")
    a("s_mov_b64 exec, 1")
    a("s_waitcnt vmcnt(20)")
    a("buffer_store_byte v14, v15, s[44:47], 0 offen sc1")
    a("buffer_atomic_add v14, v16, s[44:47], 0 offen sc1")
    a("s_lshl_b32 s61, s74, 2"); a("s_add_u32 s61, s61, 128"); a("v_mov_b32 v14, s61"); a("s_mov_b32 s62, 0x01010101")
    a("s_mov_b32 s80, 0")
    g.lab("L_w1_poll")
    a("buffer_load_dword v16, v14, s[44:47], 0 offen sc1")
    a("s_waitcnt vmcnt(0)")
    a("v_cmp_ne_u32 vcc, s62, v16"); a("s_cmp_eq_u64 vcc, 0"); a("s_cbranch_scc1 L_w1_ok")
    a("s_sleep 2"); a("s_add_u32 s80, s80, 1"); a("s_cmp_lt_u32 s80, 0x10000"); a("s_cbranch_scc1 L_w1_poll")
    g.lab("L_w1_ok")
    a("s_mov_b64 exec, -1")
    a("v_and_b32 v14, 3, v1"); a("v_lshlrev_b32 v14, 10, v14"); a("v_bfe_u32 v15, v1, 2, 2"); a("v_lshl_add_u32 v14, v15, 8, v14"); a("v_lshl_add_u32 v14, v3, 4, v14")
    a("s_lshl_b32 s61, s74, 12"); a("s_lshl_b32 s62, s63, 6"); a("s_add_u32 s61, s61, s62"); a(f"s_add_u32 s61, s61, {F1_OFF}")
    a("buffer_load_dwordx4 v[28:31], v14, s[40:43], s61 offen sc1")
    a("v_and_b32 v15, 4, v1"); a("v_cmp_eq_u32 vcc, 0, v15")
    a("s_mov_b32 s61, 0xffff0000")
    a("s_waitcnt vmcnt(0)")
    for ctrl in ("quad_perm:[1,0,3,2]","quad_perm:[2,3,0,1]"):
        for k in range(4): a(f"v_add_f32_dpp v{28+k}, v{28+k}, v{28+k} {ctrl} {DPPF}")
    for k in range(4): a(f"v_mov_b32_dpp v{32+k}, v{28+k} row_half_mirror {DPPF}")
    for k in range(4):
        a(f"v_cndmask_b32 v{36+k}, v{32+k}, v{28+k}, vcc"); a(f"v_cndmask_b32 v{40+k}, v{28+k}, v{32+k}, vcc")
    a("s_mov_b32 s62, 0x3d372713")
    a("s_mov_b32 s74, 0xc0135761")
    for k in range(4):
        gk=36+k; uk=40+k
        a(f"v_cvt_pk_bf16_f32 v28, v{gk}, v{uk}"); a(f"v_lshlrev_b32 v{gk}, 16, v28"); a(f"v_and_b32 v{uk}, s61, v28")
        a(f"v_mul_f32 v29, v{gk}, v{gk}"); a(f"v_mul_f32 v29, s62, v29"); a(f"v_fma_f32 v29, v29, v{gk}, v{gk}")
        a("v_mul_f32 v29, s74, v29"); a("v_exp_f32 v29, v29"); a("s_nop 0"); a("v_add_f32 v29, 1.0, v29"); a("v_rcp_f32 v29, v29"); a("s_nop 0")
        a(f"v_mul_f32 v29, v{gk}, v29"); a("v_cvt_pk_bf16_f32 v29, v29, v29"); a("v_and_b32 v29, s61, v29")
        a(f"v_mul_f32 v29, v29, v{uk}"); a("v_cvt_pk_bf16_f32 v29, v29, v29")
        for r in range(4): a(f"v_and_b32 v{SL(40)+4*k+r}, v29, v{6+r}")
    a("s_nop 1")
    YF=SL(32)
    for aa in range(4):
        for cb in range(5):
            C="0" if aa==0 else r4(YF+4*cb)
            a(f"v_mfma_f32_16x16x32_bf16 {r4(YF+4*cb)}, {r4(SL(40)+4*aa)}, {r4(SL(aa*5+cb))}, {C}")
    a("v_lshrrev_b32 v12, 1, v3"); a("v_mul_u32_u24 v12, 2560, v12"); a("v_lshl_add_u32 v12, v4, 5, v12"); a("v_and_b32 v13, 1, v3"); a("v_lshl_add_u32 v12, v13, 4, v12")
    a("s_mul_i32 s61, s60, 5120"); a(f"s_add_u32 s61, s61, {F2_OFF}")
    a("s_nop 4")
    for k in range(20): a(f"v_min_u32 v{YF+k}, -2, v{YF+k}")
    for cb in range(5): a(f"buffer_store_dwordx4 {r4(YF+4*cb)}, v12, s[40:43], s61 offen offset:{512*cb} sc1")
    stamp(1)
    a("s_barrier")
    a("s_mov_b32 s82, 1")
    a("s_branch L_pref")

    o.append('.section .rodata,"a"'); o.append(".p2align 6"); o.append(f".amdhsa_kernel {NAME}")
    for x in ["next_free_vgpr 256","next_free_sgpr 102","accum_offset 256","group_segment_fixed_size 0","kernarg_size 96","user_sgpr_count 2","user_sgpr_kernarg_segment_ptr 1","system_sgpr_workgroup_id_x 1","float_denorm_mode_32 3"]:
        o.append("  .amdhsa_"+x)
    o.append(".end_amdhsa_kernel")
    return "\n".join(o)+"\n"

if __name__=="__main__":
    import argparse
    ap=argparse.ArgumentParser(); ap.add_argument("out"); ap.add_argument("kw",nargs="*")
    ar=ap.parse_args()
    kw={}
    for x in ar.kw:
        k,v=x.split("="); kw[k]=int(v) if v.lstrip("-").isdigit() else v
    open(ar.out,"w").write(gen(**kw))
```

```python
import sys
NAME="parallel_sum__gqa_block_cached__geglu_ffn__decode_kernel"
HDR=open("parallel_sum__gqa_block_cached__geglu_ffn__decode.s.ref").read().split("; Override launch")[0]

QP_OFF=0x0; F1_OFF=128*1024; ST_OFF=F1_OFF+108*1024; F2_OFF=ST_OFF+16*1024; Y_OFF=F2_OFF+108*5120; WS_END=Y_OFF+256*2560
ROOT_KB=23; WS_SIZE=64*ROOT_KB*1024; assert WS_END<=WS_SIZE
STAMP_OFF=0x8000000
LQ=0; LF=256; LO=512; LO_STR=544; LY=LO+8*LO_STR; LY_STR=2560; LDS_BYTES=LY+8*LY_STR
INIT_TOTAL=256+108
LOG2E=0x3fb8aa3b
SCALE=0x3db504f3

class G:
    def __init__(s): s.o=[]; s.vm=[]
    def a(s,x): s.o.append("    "+x)
    def lab(s,x): s.o.append(x+":")
    def c(s,x): s.o.append("    ; "+x)
    def vmem(s,tag,x): s.a(x); s.vm.append(tag)
    def vreset(s): s.vm=[]
    def wait(s,tag):
        i=len(s.vm)-1-s.vm[::-1].index(tag)
        n=len(s.vm)-1-i
        assert n<=63
        s.a(f"s_waitcnt vmcnt({n})")

def gen(NVPRE=8, KNT=1, WNT=1, ONT=1, stamps=0, TORDER="mix", PRIO=0, SLEEP0=64, SLEEP1=8, SLEEP2=8):
    g=G(); a=g.a
    knt=" nt" if KNT else ""; wnt=" nt" if WNT else ""; ont=" nt" if ONT else ""
    def stamp(k,mode=1):
        if stamps==mode or (stamps and k in (0,1,2,7) and mode==1): a(f"s_memrealtime s[{84+2*k}:{85+2*k}]")
    DPPF="row_mask:0xf bank_mask:0xf"
    def xrow(op,v,t,steps=(16,32)):
        for st in steps:
            a(f"v_mov_b32 v{t}, v{v}"); a("s_nop 1"); a(f"v_permlane{st}_swap_b32 v{v}, v{t}"); a(f"{op} v{v}, v{v}, v{t}")
    def dpp(op,v,ctrl,nop=True):
        if nop: a("s_nop 1")
        a(f"{op}_dpp v{v}, v{v}, v{v} {ctrl} {DPPF}")
    def srd(d,p,size):
        a(f"s_mov_b32 s{d}, s{p}"); a(f"s_mov_b32 s{d+1}, s{p+1}"); a(f"s_mov_b32 s{d+2}, {size:#x}"); a(f"s_mov_b32 s{d+3}, 0x20000")
    def rootpoll(tag,first_issued=False):
        a("s_mov_b32 s80, 0")
        if first_issued: a(f"s_branch L_rp_chk{tag}")
        g.lab(f"L_rp{tag}")
        a("v_lshlrev_b32 v17, 2, v1")
        a("buffer_load_dword v16, v17, s[44:47], 0 offen sc1")
        g.lab(f"L_rp_chk{tag}")
        a("s_waitcnt vmcnt(0)")
        a("v_cmp_eq_u32 vcc, 0, v16"); a("s_cmp_eq_u64 vcc, 0"); a(f"s_cbranch_scc1 L_rp_ok{tag}")
        a(f"s_sleep {SLEEP1}"); a("s_add_u32 s80, s80, 1"); a("s_cmp_lt_u32 s80, 0x10000"); a(f"s_cbranch_scc1 L_rp{tag}")
        g.lab(f"L_rp_ok{tag}")
    SL=lambda i: 48+4*i
    def r4(b): return f"v[{b}:{b+3}]"
    o=g.o
    o.append(HDR.rstrip("\n"))
    o.append(f"; @launch grid=(256,1,1) block=(512,1,1) lds={LDS_BYTES}")
    o.append('.amdgcn_target "amdgcn-amd-amdhsa--gfx950"'); o.append(".text"); o.append(f".globl {NAME}"); o.append(".p2align 8"); o.append(f".type {NAME},@function"); o.append(f"{NAME}:")
    a("s_cmp_ge_u32 s2, 256"); a("s_cbranch_scc1 L_end")
    a("s_load_dwordx16 s[4:19], s[0:1], 0"); a("s_load_dwordx8 s[20:27], s[0:1], 64")
    stamp(0)
    a("v_lshrrev_b32 v3, 6, v0"); a("v_and_b32 v1, 63, v0"); a("v_readfirstlane_b32 s56, v3"); a("v_lshlrev_b32 v2, 4, v1")
    a("s_and_b32 s57, s2, 7"); a("s_lshl_b32 s57, s57, 2"); a("s_lshr_b32 s61, s2, 3"); a("s_and_b32 s62, s61, 3"); a("s_add_u32 s57, s57, s62")
    a("s_lshr_b32 s58, s2, 7")
    a("s_lshr_b32 s59, s2, 5"); a("s_and_b32 s59, s59, 3")
    a("s_lshl_b32 s60, s61, 2"); a("s_lshr_b32 s62, s2, 1"); a("s_and_b32 s62, s62, 3"); a("s_or_b32 s60, s60, s62")
    a("s_lshl_b32 s81, s58, 5"); a("s_add_u32 s81, s81, s57")
    a("s_lshl_b32 s64, s81, 20"); a("s_lshl_b32 s62, s59, 18"); a("s_add_u32 s64, s64, s62"); a("s_lshl_b32 s62, s56, 15"); a("s_add_u32 s64, s64, s62")
    for k in range(1,8): a(f"s_add_u32 s{64+k}, s64, {4096*k}")
    a("s_mov_b32 s82, 0"); a("s_mov_b32 s83, 0"); a("s_mov_b32 s63, 0")
    a("v_lshrrev_b32 v3, 4, v1"); a("v_and_b32 v4, 15, v1")
    a("s_waitcnt lgkmcnt(0)")
    srd(28,6,64<<20); srd(32,8,64<<20); srd(40,26,WS_SIZE); srd(44,24,256)
    a("s_cmp_lt_u32 s56, 2"); a("s_cbranch_scc1 L_w01")
    g.lab("L_pref")
    g.vreset()
    def kvload(kind,i,slot):
        srdn="s[28:31]" if kind=="K" else "s[32:35]"
        g.vmem((kind,i), f"buffer_load_dwordx4 {r4(SL(slot))}, v2, {srdn}, s{64+i//4} offen offset:{(i%4)*1024}{knt}")
    for i in range(32): kvload("K",i,i)
    for i in range(NVPRE): kvload("V",i,32+i)
    def masks():
        a("v_and_b32 v36, 1, v1"); a("v_lshlrev_b32 v36, 4, v36"); a("v_mov_b32 v37, 0xffff"); a("v_lshlrev_b32 v36, v36, v37")
        a("v_bfe_u32 v37, v1, 1, 2")
        for r in range(4):
            a(f"v_cmp_eq_u32 vcc, {r}, v37"); a("s_nop 1"); a(f"v_cndmask_b32 v{6+r}, 0, v36, vcc")
    masks()
    a("v_mov_b32 v45, 0"); a("v_mov_b32 v23, 0")
    srd(36,12,4096*640*2)
    a("v_mul_u32_u24 v5, 5120, v3"); a("v_lshl_add_u32 v5, v4, 4, v5")
    a("s_lshl_b32 s72, s57, 7"); a("s_lshl_b32 s62, s56, 4"); a("s_add_u32 s72, s72, s62"); a("s_mul_i32 s72, s72, 1280"); a("s_add_u32 s73, s72, 2560")
    a("s_cmp_lg_u32 s82, 0"); a("s_cbranch_scc1 L_nobar1")
    stamp(1)
    a("s_barrier")
    g.lab("L_nobar1")
    stamp(2)
    for i in range(NVPRE,20): kvload("V",i,32+i)
    a(f"v_lshlrev_b32 v36, 4, v4"); a(f"ds_read_b128 v[10:13], v36 offset:{LQ}")
    Vs=[("V",i) for i in range(20,32)]; Os=[("O",i) for i in range(20)]
    if TORDER=="mix":
        T=[]; vi=0; oi=0
        pat="OOVOVOOV"
        for k in range(32):
            ch=pat[k%8]
            if ch=="O": T.append(Os[oi]); oi+=1
            else: T.append(Vs[vi]); vi+=1
    elif TORDER=="ofirst": T=Os+Vs
    elif TORDER=="vfirst": T=Vs+Os
    slot_of={}
    for i in range(20): slot_of[("V",i)]=32+i
    for k,t in enumerate(T): slot_of[t]=k
    def tload(k):
        t=T[k]
        if t[0]=="V": kvload("V",t[1],k)
        else:
            aa,cb=divmod(t[1],5)
            so="s72" if aa<2 else "s73"
            g.vmem(t, f"buffer_load_dwordx4 {r4(SL(k))}, v5, s[36:39], {so} offen offset:{(aa%2)*1280+cb*256}{ont}")
    a("s_mov_b32 s74, 0x%x"%SCALE); a("s_mov_b32 s75, 0xffff0000")
    a("s_waitcnt lgkmcnt(0)")
    P=28; TT=36;
    for d in range(4):
        g.wait(("K",8*d+7))
        for j in range(4):
            for t in range(8):
                src2="0" if j==0 else f"v{P+t}"
                a(f"v_dot2_f32_bf16 v{P+t}, v{SL(8*d+t)+j}, v{10+j}, {src2}")
        for h in range(2):
            b=P+4*h
            a(f"v_add_f32_dpp v{TT+2*h}, v{b}, v{b} row_ror:8 row_mask:0xf bank_mask:0x3")
            a(f"v_add_f32_dpp v{TT+2*h}, v{b+1}, v{b+1} row_ror:8 row_mask:0xf bank_mask:0xc")
            a(f"v_add_f32_dpp v{TT+2*h+1}, v{b+2}, v{b+2} row_ror:8 row_mask:0xf bank_mask:0x3")
            a(f"v_add_f32_dpp v{TT+2*h+1}, v{b+3}, v{b+3} row_ror:8 row_mask:0xf bank_mask:0xc")
        tload(8*d); tload(8*d+1)
        for h in range(2):
            a(f"v_add_f32_dpp v{TT+4+h}, v{TT+2*h}, v{TT+2*h} row_shl:4 row_mask:0xf bank_mask:0x5")
            a(f"v_add_f32_dpp v{TT+4+h}, v{TT+2*h+1}, v{TT+2*h+1} row_shr:4 row_mask:0xf bank_mask:0xa")
        tload(8*d+2); tload(8*d+3)
        for h in range(2): a(f"v_add_f32_dpp v{TT+4+h}, v{TT+4+h}, v{TT+4+h} quad_perm:[1,0,3,2] {DPPF}")
        tload(8*d+4); tload(8*d+5)
        for h in range(2): a(f"v_add_f32_dpp v{TT+4+h}, v{TT+4+h}, v{TT+4+h} quad_perm:[2,3,0,1] {DPPF}")
        tload(8*d+6); tload(8*d+7)
        a(f"v_cvt_pk_bf16_f32 v{TT}, v{TT+4}, v{TT+5}")
        a(f"v_lshlrev_b32 v{TT+1}, 16, v{TT}"); a(f"v_and_b32 v{TT+2}, s75, v{TT}")
        a(f"v_mul_f32 v{TT+1}, s74, v{TT+1}"); a(f"v_mul_f32 v{TT+2}, s74, v{TT+2}")
        a(f"v_cvt_pk_bf16_f32 v{TT}, v{TT+1}, v{TT+2}")
        a(f"v_lshlrev_b32 v{14+2*d}, 16, v{TT}"); a(f"v_and_b32 v{15+2*d}, s75, v{TT}")
    a("v_max3_f32 v36, v14, v15, v16"); a("v_max3_f32 v37, v17, v18, v19"); a("v_max3_f32 v36, v36, v20, v21"); a("v_max_f32 v36, v36, v37")
    dpp("v_max_f32",36,"row_ror:4"); dpp("v_max_f32",36,"row_ror:8"); xrow("v_max_f32",36,37)
    a("s_mov_b32 s74, 0x%x"%LOG2E)
    a("v_mul_f32 v38, s74, v36")
    for k in range(8): a(f"v_fma_f32 v{14+k}, v{14+k}, s74, -v38")
    for k in range(8): a(f"v_exp_f32 v{14+k}, v{14+k}")
    a("s_nop 0")
    a("v_add_f32 v39, v14, v15"); a("v_add_f32 v36, v16, v17"); a("v_add_f32 v39, v39, v18"); a("v_add_f32 v36, v36, v19"); a("v_add_f32 v39, v39, v20"); a("v_add_f32 v36, v36, v21"); a("v_add_f32 v39, v39, v36")
    for k in range(8): a(f"v_cvt_pk_bf16_f32 v{14+k}, v{14+k}, v{14+k}")
    dpp("v_add_f32",39,"row_ror:4",nop=False); dpp("v_add_f32",39,"row_ror:8"); xrow("v_add_f32",39,37)
    a("v_min_u32 v38, -2, v38"); a("v_min_u32 v39, -2, v39")
    a("s_lshl_b32 s61, s81, 5"); a("s_lshl_b32 s62, s59, 3"); a("s_add_u32 s61, s61, s62"); a("s_add_u32 s61, s61, s56"); a("s_lshl_b32 s61, s61, 3"); a(f"s_add_u32 s61, s61, {ST_OFF}")
    a("v_mov_b32 v36, 0")
    a("s_mov_b64 exec, 1")
    g.vmem("st","buffer_store_dwordx2 v[38:39], v36, s[40:43], s61 offen sc1")
    a("s_mov_b64 exec, -1")
    stamp(3)
    beta=[0,2,1,3]
    def buildA(i):
        A=28+4*(i%2)
        for r in range(4):
            a(f"v_and_b32_dpp v{A+r}, v{14+i//4}, v{6+r} row_newbcast:{4*beta[i%4]} {DPPF}")
    buildA(0)
    for i in range(32):
        if i<31: buildA(i+1)
        else: a("s_nop 1")
        g.wait(("V",i))
        A=28+4*(i%2)
        C="0" if i==0 else "v[24:27]"
        a(f"v_mfma_f32_16x16x32_bf16 v[24:27], {r4(A)}, {r4(SL(slot_of[('V',i)]))}, {C}")
    a("v_lshlrev_b32 v36, 5, v4"); a("v_lshl_add_u32 v36, v3, 4, v36")
    a(f"s_mul_i32 s61, s56, {LO_STR}"); a("v_add_u32 v41, s61, v36")
    a(f"s_mul_i32 s61, s56, {LY_STR}"); a("v_add_u32 v42, s61, v36")
    a("s_mov_b64 exec, 0xffffffff")
    a("s_nop 3")
    a(f"ds_write_b128 v41, v[24:27] offset:{LO}")
    a("s_mov_b64 exec, -1")
    a("v_and_b32 v36, 7, v1"); a(f"v_mul_u32_u24 v40, {LO_STR}, v36"); a("v_lshl_add_u32 v40, v3, 4, v40"); a("s_lshl_b32 s61, s56, 6"); a("v_add_u32 v40, s61, v40")
    a("s_lshl_b32 s61, s59, 5"); a("v_lshl_add_u32 v43, v36, 2, s61")
    stamp(4)
    a("s_cmp_eq_u32 s56, 2"); a("s_cbranch_scc1 L_w2stats")
    a("s_cmp_eq_u32 s56, 3"); a("s_cbranch_scc1 L_w3pre")
    g.lab("L_bar2")
    a("s_waitcnt lgkmcnt(0)")
    a("s_barrier")
    stamp(5)
    a(f"ds_read_b128 v[36:39], v40 offset:{LO}")
    a(f"ds_read_b32 v44, v43 offset:{LF}")
    a("s_waitcnt lgkmcnt(0)")
    for k in range(4): a(f"v_mul_f32 v{36+k}, v44, v{36+k}")
    for ctrl in ("quad_perm:[1,0,3,2]","quad_perm:[2,3,0,1]","row_half_mirror"):
        for k in range(4): a(f"v_add_f32_dpp v{36+k}, v{36+k}, v{36+k} {ctrl} {DPPF}")
    for k in range(4): a(f"v_cvt_pk_bf16_f32 v{36+k}, v{36+k}, v{36+k}")
    YA=SL(32)
    AB=SL(40)
    for k in range(4):
        for r in range(4): a(f"v_and_b32 v{AB+4*k+r}, v{36+k}, v{6+r}")
    a("s_waitcnt vmcnt(0)")
    a("s_nop 0")
    for aa in range(4):
        for cb in range(5):
            C="0" if aa==0 else r4(YA+4*cb)
            a(f"v_mfma_f32_16x16x32_bf16 {r4(YA+4*cb)}, {r4(AB+4*aa)}, {r4(SL(slot_of[('O',aa*5+cb)]))}, {C}")
    a("s_mov_b64 exec, 0xffffffff")
    a("s_nop 2")
    for cb in range(5):
        a(f"ds_write_b128 v42, {r4(YA+4*cb)} offset:{LY+512*cb}")
        if cb<4: a("s_nop 0")
    a("s_mov_b64 exec, -1")
    a("v_lshlrev_b32 v36, 4, v0")
    a("s_lshl_b32 s61, s58, 7"); a("s_lshl_b32 s62, s57, 2"); a("s_add_u32 s61, s61, s62"); a("s_add_u32 s61, s61, s59"); a("s_mul_i32 s61, s61, 2560"); a(f"s_add_u32 s61, s61, {Y_OFF}")
    a("s_waitcnt lgkmcnt(0)")
    a("s_barrier")
    stamp(6)
    a("s_cmp_ge_u32 s56, 3"); a("s_cbranch_scc1 L_fin")
    a("v_cmp_gt_u32 vcc, 160, v0"); a("s_and_saveexec_b64 s[76:77], vcc")
    for w in range(8): a(f"ds_read_b128 {r4(SL(w))}, v36 offset:{LY+LY_STR*w}")
    a("s_waitcnt lgkmcnt(0)" if stamps else "s_waitcnt lgkmcnt(4)")
    for k in range(2):
        a(f"v_pk_add_f32 v[{SL(0)+2*k}:{SL(0)+2*k+1}], v[{SL(0)+2*k}:{SL(0)+2*k+1}], v[{SL(1)+2*k}:{SL(1)+2*k+1}]")
        a(f"v_pk_add_f32 v[{SL(2)+2*k}:{SL(2)+2*k+1}], v[{SL(2)+2*k}:{SL(2)+2*k+1}], v[{SL(3)+2*k}:{SL(3)+2*k+1}]")
    for k in range(2):
        a(f"v_pk_add_f32 v[{SL(0)+2*k}:{SL(0)+2*k+1}], v[{SL(0)+2*k}:{SL(0)+2*k+1}], v[{SL(2)+2*k}:{SL(2)+2*k+1}]")
    a("s_waitcnt lgkmcnt(0)")
    for k in range(2):
        a(f"v_pk_add_f32 v[{SL(4)+2*k}:{SL(4)+2*k+1}], v[{SL(4)+2*k}:{SL(4)+2*k+1}], v[{SL(5)+2*k}:{SL(5)+2*k+1}]")
        a(f"v_pk_add_f32 v[{SL(6)+2*k}:{SL(6)+2*k+1}], v[{SL(6)+2*k}:{SL(6)+2*k+1}], v[{SL(7)+2*k}:{SL(7)+2*k+1}]")
    for k in range(2):
        a(f"v_pk_add_f32 v[{SL(4)+2*k}:{SL(4)+2*k+1}], v[{SL(4)+2*k}:{SL(4)+2*k+1}], v[{SL(6)+2*k}:{SL(6)+2*k+1}]")
    for k in range(2):
        a(f"v_pk_add_f32 v[{SL(0)+2*k}:{SL(0)+2*k+1}], v[{SL(0)+2*k}:{SL(0)+2*k+1}], v[{SL(4)+2*k}:{SL(4)+2*k+1}]")
    for k in range(4): a(f"v_min_u32 v{SL(0)+k}, -2, v{SL(0)+k}")
    a(f"buffer_store_dwordx4 {r4(SL(0))}, v36, s[40:43], s61 offen sc1")
    a("s_mov_b64 exec, -1")
    a("s_branch L_done")
    g.lab("L_fin")
    a("s_cmp_lg_u32 s56, 3"); a("s_cbranch_scc1 L_done")
    a("s_cmp_eq_u32 s83, 0"); a("s_cbranch_scc1 L_done")
    a("s_mov_b32 s80, 0")
    g.lab("L_fin_poll")
    a("s_mov_b32 s62, s63")
    for i in range(8):
        a(f"buffer_load_dwordx4 {r4(SL(i))}, v45, s[40:43], s62 offen sc1")
        if i<7: a("s_add_u32 s62, s62, 40960")
    a("s_waitcnt vmcnt(0)")
    def allvalid(regs,t):
        a(f"v_max3_u32 v{t}, v{regs[0]}, v{regs[1]}, v{regs[2]}")
        k=3
        while k+1<len(regs):
            a(f"v_max3_u32 v{t}, v{t}, v{regs[k]}, v{regs[k+1]}"); k+=2
        if k<len(regs): a(f"v_max_u32 v{t}, v{t}, v{regs[k]}")
        a(f"v_cmp_eq_u32 vcc, -1, v{t}")
        a("s_cmp_eq_u64 vcc, 0")
    allvalid(list(range(SL(0),SL(8))),36)
    a("s_cbranch_scc1 L_fin_ok")
    a("s_sleep 4"); a("s_add_u32 s80, s80, 1"); a("s_cmp_lt_u32 s80, 0x10000"); a("s_cbranch_scc1 L_fin_poll")
    g.lab("L_fin_ok")
    def sum_scatter(n,dst):
        for i in range(1,n):
            for k in range(2):
                a(f"v_pk_add_f32 v[{SL(0)+2*k}:{SL(0)+2*k+1}], v[{SL(0)+2*k}:{SL(0)+2*k+1}], v[{SL(i)+2*k}:{SL(i)+2*k+1}]")
        b=SL(0)
        a("s_nop 1")
        a(f"v_add_f32_dpp v36, v{b}, v{b} row_ror:8 row_mask:0xf bank_mask:0x3")
        a(f"v_add_f32_dpp v36, v{b+1}, v{b+1} row_ror:8 row_mask:0xf bank_mask:0xc")
        a(f"v_add_f32_dpp v37, v{b+2}, v{b+2} row_ror:8 row_mask:0xf bank_mask:0x3")
        a(f"v_add_f32_dpp v37, v{b+3}, v{b+3} row_ror:8 row_mask:0xf bank_mask:0xc")
        a(f"v_add_f32_dpp v{dst}, v36, v36 row_shl:4 row_mask:0xf bank_mask:0x5")
        a("s_nop 0")
        a(f"v_add_f32_dpp v{dst}, v37, v37 row_shr:4 row_mask:0xf bank_mask:0xa")
        xrow("v_add_f32",dst,36)
    sum_scatter(8,38)
    a("v_cvt_pk_bf16_f32 v38, v38, v38"); a("v_lshlrev_b32 v38, 16, v38"); a("v_add_f32 v38, v46, v38")
    a("v_cvt_pk_bf16_f32 v38, v38, v38"); a("v_lshlrev_b32 v38, 16, v38"); a("v_add_f32 v38, v47, v38")
    a("v_cvt_pk_bf16_f32 v38, v38, v38")
    srd(52,22,2560)
    a("s_mov_b64 exec, 0xffff")
    a("buffer_store_short v38, v23, s[52:55], 0 offen")
    a("s_mov_b64 exec, -1")
    g.lab("L_done")
    if stamps:
        stamp(7)
        a("s_waitcnt lgkmcnt(0)")
        a(f"s_add_u32 s52, s26, {STAMP_OFF}"); a("s_addc_u32 s53, s27, 0"); a("s_mov_b32 s54, 0x100000"); a("s_mov_b32 s55, 0x20000")
        for k in range(8): a(f"v_mov_b32 v{48+k}, s{84+2*k}")
        a("s_lshl_b32 s61, s2, 3"); a("s_add_u32 s61, s61, s56"); a("s_lshl_b32 s61, s61, 5")
        a("v_mov_b32 v36, 0"); a("s_mov_b64 exec, 1")
        a("buffer_store_dwordx4 v[48:51], v36, s[52:55], s61 offen"); a("buffer_store_dwordx4 v[52:55], v36, s[52:55], s61 offen offset:16")
    g.lab("L_end")
    a("s_endpgm")

    g.lab("L_w2stats")
    a("v_and_b32 v36, 31, v1"); a("v_lshlrev_b32 v44, 3, v36"); a("v_lshlrev_b32 v45, 2, v36")
    a("s_lshl_b32 s61, s81, 8"); a(f"s_add_u32 s61, s61, {ST_OFF}")
    a("s_mov_b32 s80, 0")
    g.lab("L_w2_poll")
    a("buffer_load_dwordx2 v[36:37], v44, s[40:43], s61 offen sc1")
    a("s_waitcnt vmcnt(0)")
    a("v_max_u32 v38, v36, v37"); a("v_cmp_eq_u32 vcc, -1, v38"); a("s_cmp_eq_u64 vcc, 0"); a("s_cbranch_scc1 L_w2_ok")
    a("s_sleep 8"); a("s_add_u32 s80, s80, 1"); a("s_cmp_lt_u32 s80, 0x10000"); a("s_cbranch_scc1 L_w2_poll")
    g.lab("L_w2_ok")
    a("v_mov_b32 v38, v36")
    for ctrl in ("quad_perm:[1,0,3,2]","quad_perm:[2,3,0,1]","row_half_mirror","row_mirror"): dpp("v_max_f32",38,ctrl)
    xrow("v_max_f32",38,39,steps=(16,))
    a("v_sub_f32 v36, v36, v38"); a("v_exp_f32 v36, v36"); a("s_nop 0"); a("v_mul_f32 v37, v36, v37")
    for ctrl in ("quad_perm:[1,0,3,2]","quad_perm:[2,3,0,1]","row_half_mirror","row_mirror"): dpp("v_add_f32",37,ctrl)
    xrow("v_add_f32",37,39,steps=(16,))
    a("v_rcp_f32 v37, v37"); a("s_nop 0"); a("v_mul_f32 v36, v36, v37")
    a(f"ds_write_b32 v45, v36 offset:{LF}")
    a("s_branch L_bar2")

    g.lab("L_w3pre")
    a("s_and_b32 s61, s2, 1"); a("s_cmp_eq_u32 s61, 0"); a("s_cbranch_scc1 L_bar2")
    a("s_cmp_ge_u32 s60, 80"); a("s_cbranch_scc1 L_bar2")
    a("s_mov_b32 s83, 1")
    a("s_cmp_ge_u32 s60, 40"); a("s_cselect_b32 s61, 1, 0"); a("s_mul_i32 s62, s61, 40"); a("s_sub_u32 s62, s60, s62")
    a("s_mul_i32 s63, s61, 327680"); a("s_lshl_b32 s74, s62, 6"); a("s_add_u32 s63, s63, s74"); a(f"s_add_u32 s63, s63, {Y_OFF}")
    a("v_lshrrev_b32 v36, 2, v1"); a("v_and_b32 v37, 3, v1")
    a("v_mul_u32_u24 v45, 2560, v36"); a("v_lshl_add_u32 v45, v37, 4, v45")
    a("v_mul_u32_u24 v44, 5120, v36"); a("v_lshl_add_u32 v44, v37, 4, v44")
    a("s_mul_i32 s75, s61, 2560"); a("s_add_u32 s75, s75, s74"); a(f"s_add_u32 s75, s75, {F2_OFF}")
    a("v_and_b32 v38, 1, v36"); a("v_lshlrev_b32 v38, 1, v38"); a("v_bfe_u32 v39, v36, 1, 1"); a("v_or_b32 v38, v38, v39")
    a("v_lshl_add_u32 v38, v37, 2, v38"); a("v_lshlrev_b32 v38, 1, v38")
    a("s_mul_i32 s61, s61, 1280"); a("s_lshl_b32 s62, s62, 5"); a("s_add_u32 s61, s61, s62"); a("v_add_u32 v23, s61, v38")
    srd(48,4,2560)
    a("buffer_load_ushort v46, v23, s[48:51], 0 offen")
    a("v_cmp_gt_u32 vcc, 12, v36"); a("v_mov_b32 v39, 0x7ffffff0"); a("s_nop 0"); a("v_cndmask_b32 v39, v39, v44, vcc")
    a("s_mov_b32 s80, 0")
    FS=32
    g.lab("L_w3_poll")
    a("s_mov_b32 s62, s75")
    for i in range(7):
        vo="v44" if i<6 else "v39"
        a(f"buffer_load_dwordx4 {r4(SL(FS+i))}, {vo}, s[40:43], s62 offen sc1")
        if i<6: a("s_add_u32 s62, s62, 81920")
    a("s_waitcnt vmcnt(0)")
    allvalid(list(range(SL(FS),SL(FS+7))),36)
    a("s_cbranch_scc1 L_w3_ok")
    a("s_sleep 8"); a("s_add_u32 s80, s80, 1"); a("s_cmp_lt_u32 s80, 0x10000"); a("s_cbranch_scc1 L_w3_poll")
    g.lab("L_w3_ok")
    SLsave=SL
    SL2=lambda i: 48+4*(FS+i)
    for i in range(1,7):
        for k in range(2):
            a(f"v_pk_add_f32 v[{SL2(0)+2*k}:{SL2(0)+2*k+1}], v[{SL2(0)+2*k}:{SL2(0)+2*k+1}], v[{SL2(i)+2*k}:{SL2(i)+2*k+1}]")
    b=SL2(0)
    a("s_nop 1")
    a(f"v_add_f32_dpp v36, v{b}, v{b} row_ror:8 row_mask:0xf bank_mask:0x3")
    a(f"v_add_f32_dpp v36, v{b+1}, v{b+1} row_ror:8 row_mask:0xf bank_mask:0xc")
    a(f"v_add_f32_dpp v37, v{b+2}, v{b+2} row_ror:8 row_mask:0xf bank_mask:0x3")
    a(f"v_add_f32_dpp v37, v{b+3}, v{b+3} row_ror:8 row_mask:0xf bank_mask:0xc")
    a(f"v_add_f32_dpp v47, v36, v36 row_shl:4 row_mask:0xf bank_mask:0x5")
    a("s_nop 0")
    a(f"v_add_f32_dpp v47, v37, v37 row_shr:4 row_mask:0xf bank_mask:0xa")
    xrow("v_add_f32",47,36)
    a("v_cvt_pk_bf16_f32 v47, v47, v47"); a("v_lshlrev_b32 v47, 16, v47"); a("v_lshlrev_b32 v46, 16, v46")
    a("s_branch L_bar2")

    g.lab("L_w01")
    a("s_and_b32 s61, s2, 1"); a("s_cmp_eq_u32 s61, 0"); a("s_cbranch_scc1 L_even01")
    a("s_cmp_eq_u32 s56, 0"); a("s_cbranch_scc1 L_w0_odd")
    a("s_and_b32 s61, s2, 2"); a("s_cmp_lg_u32 s61, 0"); a("s_cbranch_scc1 L_pref")
    a("v_mov_b32 v48, -1"); a("v_mov_b32 v49, -1"); a("v_mov_b32 v50, -1"); a("v_mov_b32 v51, -1")
    a("s_lshr_b32 s62, s2, 2"); a(f"s_mul_i32 s61, s62, {ROOT_KB*1024}")
    for k in range(ROOT_KB):
        if k%4==0 and k: a("s_add_u32 s61, s61, 4096")
        a(f"buffer_store_dwordx4 v[48:51], v2, s[40:43], s61 offen offset:{1024*(k%4)} sc1")
    a("s_lshl_b32 s62, s62, 2"); a("v_mov_b32 v52, 1"); a("v_mov_b32 v53, s62")
    a("s_mov_b64 exec, 1")
    stamp(3,2)
    a("s_waitcnt vmcnt(0)")
    stamp(4,2)
    a("buffer_store_dword v52, v53, s[44:47], 0 offen sc1")
    if stamps==2:
        a("s_waitcnt vmcnt(0)"); stamp(5,2)
    a("s_mov_b64 exec, -1")
    a("s_branch L_pref")
    g.lab("L_w0_odd")
    a(f"s_sleep {SLEEP0}")
    stamp(3,2)
    rootpoll("A")
    stamp(5,2)
    a("s_branch L_w0_poll0")
    g.lab("L_even01")
    a("s_and_b32 s63, s60, 3"); a("s_lshr_b32 s74, s60, 2")
    a("s_cmp_eq_u32 s56, 0"); a("s_cbranch_scc1 L_w0_addr")
    a("s_cmp_ge_u32 s60, 108"); a("s_cbranch_scc1 L_pref")
    a("v_and_b32 v36, 8, v1"); a("v_cmp_eq_u32 vcc, 0, v36")
    a("v_mov_b32 v36, s18"); a("v_mov_b32 v37, s16"); a("v_cndmask_b32 v10, v36, v37, vcc")
    a("v_mov_b32 v36, s19"); a("v_mov_b32 v37, s17"); a("v_cndmask_b32 v11, v36, v37, vcc")
    a("s_mul_i32 s61, s63, 552960"); a("s_lshl_b32 s62, s74, 7"); a("s_add_u32 s61, s61, s62")
    a("s_mov_b32 s62, 138240"); a("v_mul_lo_u32 v36, v3, s62"); a("v_and_b32 v37, 7, v1"); a("v_lshl_add_u32 v36, v37, 4, v36"); a("v_add_u32 v36, s61, v36")
    a("s_mov_b32 s78, 3456"); a("s_mov_b32 s79, 0")
    a("s_lshl_b32 s75, s60, 10"); a(f"s_add_u32 s75, s75, {F1_OFF}")
    a("s_branch L_unit")
    g.lab("L_w0_addr")
    a("v_mov_b32 v10, s10"); a("v_mov_b32 v11, s11")
    a("s_mul_i32 s61, s63, 1310720"); a("s_lshl_b32 s62, s74, 8"); a("s_add_u32 s61, s61, s62")
    a("s_mov_b32 s62, 327680"); a("v_mul_lo_u32 v36, v3, s62"); a("v_lshl_add_u32 v36, v4, 4, v36"); a("v_add_u32 v36, s61, v36")
    a("s_mov_b32 s78, 8192"); a("s_mov_b32 s79, 0")
    a("s_lshl_b32 s75, s60, 10"); a(f"s_add_u32 s75, s75, {QP_OFF}")
    g.lab("L_unit")
    g.vreset()
    srd(48,4,2560)
    a("v_mov_b32 v37, 0"); a("v_lshl_add_u64 v[10:11], v[36:37], 0, v[10:11]")
    a("v_bfe_u32 v36, v1, 3, 1"); a("v_mul_u32_u24 v36, 1280, v36")
    a("v_and_b32 v37, 7, v1"); a("v_lshl_add_u32 v37, v3, 3, v37"); a("v_lshl_add_u32 v37, v37, 3, v36")
    for k in range(5): g.vmem(("xs",k),f"buffer_load_dwordx2 v[{14+2*k}:{15+2*k}], v37, s[48:51], 0 offen offset:{256*k}")
    a("v_mul_u32_u24 v12, 80, v3"); a("v_add_u32 v12, v12, v36"); a("s_mul_i32 s61, s63, 320")
    for k in range(5): g.vmem(("xc",k),f"buffer_load_dwordx4 {r4(28+4*k)}, v12, s[48:51], s61 offen offset:{16*k}")
    for i in range(40):
        g.vmem(("w",i),f"global_load_dwordx4 {r4(SL(i))}, v[10:11], off{wnt}")
        if i<39: a("v_lshl_add_u64 v[10:11], v[10:11], 0, s[78:79]")
    a("v_lshlrev_b32 v12, 2, v1")
    g.vmem("root","buffer_load_dword v5, v12, s[44:47], 0 offen sc1")
    a("v_and_b32 v12, 1, v1"); a("v_lshlrev_b32 v12, 4, v12"); a("v_mov_b32 v13, 0xffff"); a("v_lshlrev_b32 v12, v12, v13")
    a("v_bfe_u32 v13, v1, 1, 2")
    for r in range(4):
        a(f"v_cmp_eq_u32 vcc, {r}, v13"); a("s_nop 1"); a(f"v_cndmask_b32 v{6+r}, 0, v12, vcc")
    a("s_mov_b32 s61, 0xffff0000")
    g.wait(("xs",4))
    U=208
    for k in range(10):
        a(f"v_lshlrev_b32 v{U+2*k}, 16, v{14+k}"); a(f"v_and_b32 v{U+2*k+1}, s61, v{14+k}")
    a(f"v_add_f32 v12, v{U}, v{U+1}"); a(f"v_add_f32 v13, v{U+2}, v{U+3}")
    for k in range(4,20,2):
        a(f"v_add_f32 v12, v12, v{U+k}"); a(f"v_add_f32 v13, v13, v{U+k+1}")
    a("v_add_f32 v12, v12, v13")
    def red32(v,t):
        for ctrl in ("quad_perm:[1,0,3,2]","quad_perm:[2,3,0,1]","row_half_mirror"): dpp("v_add_f32",v,ctrl)
        xrow("v_add_f32",v,t)
    red32(12,13)
    a("s_mov_b32 s62, 0x3acccccd")
    a("v_mul_f32 v12, s62, v12")
    for k in range(20): a(f"v_sub_f32 v{U+k}, v{U+k}, v12")
    a(f"v_mul_f32 v14, v{U}, v{U}"); a(f"v_mul_f32 v15, v{U+1}, v{U+1}")
    for k in range(2,20,2):
        a(f"v_fmac_f32 v14, v{U+k}, v{U+k}"); a(f"v_fmac_f32 v15, v{U+k+1}, v{U+k+1}")
    a("v_add_f32 v14, v14, v15")
    red32(14,13)
    a("v_mul_f32 v14, s62, v14")
    a("v_cvt_pk_bf16_f32 v13, v12, v14"); a("v_lshlrev_b32 v12, 16, v13"); a("v_and_b32 v14, s61, v13")
    a("v_add_f32 v14, 0x3727c5ac, v14"); a("v_cvt_pk_bf16_f32 v14, v14, v14"); a("v_and_b32 v14, s61, v14")
    a("v_sqrt_f32 v14, v14"); a("s_nop 0"); a("v_cvt_pk_bf16_f32 v14, v14, v14"); a("v_and_b32 v14, s61, v14")
    a("v_rcp_f32 v14, v14")
    g.wait(("xc",4))
    stamp(3,2)
    for k in range(20):
        a(f"v_lshlrev_b32 v16, 16, v{28+k}"); a(f"v_and_b32 v17, s61, v{28+k}")
        a("v_sub_f32 v16, v16, v12"); a("v_sub_f32 v17, v17, v12")
        a("v_cvt_pk_bf16_f32 v18, v16, v17")
        a("v_lshlrev_b32 v16, 16, v18"); a("v_and_b32 v17, s61, v18")
        a("v_mul_f32 v16, v16, v14"); a("v_mul_f32 v17, v17, v14")
        a(f"v_cvt_pk_bf16_f32 v{U+2*k}, v16, v16"); a(f"v_cvt_pk_bf16_f32 v{U+2*k+1}, v17, v17")
    def buildX(i):
        A=248+4*(i%2)
        for r in range(4): a(f"v_and_b32 v{A+r}, v{U+i}, v{6+r}")
    buildX(0)
    for i in range(40):
        if i<39: buildX(i+1)
        else: a("s_nop 1")
        g.wait(("w",i))
        C="0" if i==0 else "v[24:27]"
        a(f"v_mfma_f32_16x16x32_bf16 v[24:27], {r4(248+4*(i%2))}, {r4(SL(i))}, {C}")
    a("v_lshrrev_b32 v12, 1, v3"); a("v_lshlrev_b32 v12, 9, v12"); a("v_lshl_add_u32 v12, v4, 5, v12"); a("v_and_b32 v13, 1, v3"); a("v_lshl_add_u32 v12, v13, 4, v12")
    a("s_waitcnt vmcnt(0)")
    stamp(4,2)
    a("v_mov_b32 v16, v5")
    rootpoll("B",first_issued=True)
    stamp(5,2)
    for k in range(4): a(f"v_min_u32 v{24+k}, -2, v{24+k}")
    a("buffer_store_dwordx4 v[24:27], v12, s[40:43], s75 offen sc1")
    a("s_cmp_eq_u32 s56, 1"); a("s_cbranch_scc1 L_w1_ffn2")
    g.lab("L_w0_poll0")
    a("v_lshlrev_b32 v18, 3, v1"); a("v_lshlrev_b32 v19, 2, v1")
    a("s_lshl_b32 s61, s57, 12"); a("s_lshl_b32 s62, s58, 9"); a("s_add_u32 s61, s61, s62"); a(f"s_add_u32 s61, s61, {QP_OFF}")
    a("s_mov_b32 s80, 0")
    g.lab("L_w0_poll")
    for k in range(4): a(f"buffer_load_dwordx2 v[{28+2*k}:{29+2*k}], v18, s[40:43], s61 offen offset:{1024*k} sc1")
    a("s_waitcnt vmcnt(0)")
    allvalid(list(range(28,36)),16)
    a("s_cbranch_scc1 L_w0_ok")
    a(f"s_sleep {SLEEP2}"); a("s_add_u32 s80, s80, 1"); a("s_cmp_lt_u32 s80, 0x10000"); a("s_cbranch_scc1 L_w0_poll")
    g.lab("L_w0_ok")
    stamp(6,2)
    a("v_pk_add_f32 v[28:29], v[28:29], v[30:31]"); a("v_pk_add_f32 v[32:33], v[32:33], v[34:35]"); a("v_pk_add_f32 v[28:29], v[28:29], v[32:33]")
    a("v_cvt_pk_bf16_f32 v28, v28, v29")
    a(f"ds_write_b32 v19, v28 offset:{LQ}")
    a("s_waitcnt lgkmcnt(0)")
    stamp(1)
    a("s_barrier")
    a("s_mov_b32 s82, 1")
    a("s_branch L_pref")
    g.lab("L_w1_ffn2")
    srd(52,20,1728*640*2)
    a("v_mul_u32_u24 v5, 5120, v3"); a("v_lshl_add_u32 v5, v4, 4, v5")
    a("s_mul_i32 s72, s60, 20480"); a("s_add_u32 s73, s72, 2560")
    for t in range(20):
        aa,cb=divmod(t,5)
        so="s72" if aa<2 else "s73"
        a(f"buffer_load_dwordx4 {r4(SL(t))}, v5, s[52:55], {so} offen offset:{(aa%2)*1280+cb*256}{wnt}")
    a("v_and_b32 v14, 3, v1"); a("v_lshlrev_b32 v14, 10, v14"); a("v_bfe_u32 v15, v1, 2, 2"); a("v_lshl_add_u32 v14, v15, 8, v14"); a("v_lshl_add_u32 v14, v3, 4, v14")
    a("s_lshl_b32 s61, s74, 12"); a("s_lshl_b32 s62, s63, 6"); a("s_add_u32 s61, s61, s62"); a(f"s_add_u32 s61, s61, {F1_OFF}")
    a("s_mov_b32 s80, 0")
    g.lab("L_w1_poll")
    a("buffer_load_dwordx4 v[28:31], v14, s[40:43], s61 offen sc1")
    a("s_waitcnt vmcnt(0)")
    allvalid(list(range(28,32)),16)
    a("s_cbranch_scc1 L_w1_ok")
    a(f"s_sleep {SLEEP2}"); a("s_add_u32 s80, s80, 1"); a("s_cmp_lt_u32 s80, 0x10000"); a("s_cbranch_scc1 L_w1_poll")
    g.lab("L_w1_ok")
    stamp(6,2)
    a("v_and_b32 v15, 4, v1"); a("v_cmp_eq_u32 vcc, 0, v15")
    a("s_mov_b32 s61, 0xffff0000")
    for ctrl in ("quad_perm:[1,0,3,2]","quad_perm:[2,3,0,1]"):
        for k in range(4): a(f"v_add_f32_dpp v{28+k}, v{28+k}, v{28+k} {ctrl} {DPPF}")
    for k in range(4): a(f"v_mov_b32_dpp v{32+k}, v{28+k} row_half_mirror {DPPF}")
    for k in range(4):
        a(f"v_cndmask_b32 v{36+k}, v{32+k}, v{28+k}, vcc"); a(f"v_cndmask_b32 v{40+k}, v{28+k}, v{32+k}, vcc")
    a("s_mov_b32 s62, 0x3d372713")
    a("s_mov_b32 s74, 0xc0135761")
    for k in range(4):
        gk=36+k; uk=40+k
        a(f"v_cvt_pk_bf16_f32 v28, v{gk}, v{uk}"); a(f"v_lshlrev_b32 v{gk}, 16, v28"); a(f"v_and_b32 v{uk}, s61, v28")
        a(f"v_mul_f32 v29, v{gk}, v{gk}"); a(f"v_mul_f32 v29, s62, v29"); a(f"v_fma_f32 v29, v29, v{gk}, v{gk}")
        a("v_mul_f32 v29, s74, v29"); a("v_exp_f32 v29, v29"); a("s_nop 0"); a("v_add_f32 v29, 1.0, v29"); a("v_rcp_f32 v29, v29"); a("s_nop 0")
        a(f"v_mul_f32 v29, v{gk}, v29"); a("v_cvt_pk_bf16_f32 v29, v29, v29"); a("v_and_b32 v29, s61, v29")
        a(f"v_mul_f32 v29, v29, v{uk}"); a("v_cvt_pk_bf16_f32 v29, v29, v29")
        for r in range(4): a(f"v_and_b32 v{SL(40)+4*k+r}, v29, v{6+r}")
    a("s_nop 1")
    YF=SL(32)
    for aa in range(4):
        for cb in range(5):
            C="0" if aa==0 else r4(YF+4*cb)
            a(f"v_mfma_f32_16x16x32_bf16 {r4(YF+4*cb)}, {r4(SL(40)+4*aa)}, {r4(SL(aa*5+cb))}, {C}")
    a("v_lshrrev_b32 v12, 1, v3"); a("v_mul_u32_u24 v12, 2560, v12"); a("v_lshl_add_u32 v12, v4, 5, v12"); a("v_and_b32 v13, 1, v3"); a("v_lshl_add_u32 v12, v13, 4, v12")
    a("s_mul_i32 s61, s60, 5120"); a(f"s_add_u32 s61, s61, {F2_OFF}")
    a("s_nop 4")
    for k in range(20): a(f"v_min_u32 v{YF+k}, -2, v{YF+k}")
    for cb in range(5): a(f"buffer_store_dwordx4 {r4(YF+4*cb)}, v12, s[40:43], s61 offen offset:{512*cb} sc1")
    stamp(1)
    a("s_barrier")
    a("s_mov_b32 s82, 1")
    a("s_branch L_pref")

    o.append('.section .rodata,"a"'); o.append(".p2align 6"); o.append(f".amdhsa_kernel {NAME}")
    for x in ["next_free_vgpr 256","next_free_sgpr 102","accum_offset 256","group_segment_fixed_size 0","kernarg_size 96","user_sgpr_count 2","user_sgpr_kernarg_segment_ptr 1","system_sgpr_workgroup_id_x 1","float_denorm_mode_32 3"]:
        o.append("  .amdhsa_"+x)
    o.append(".end_amdhsa_kernel")
    return "\n".join(o)+"\n"

if __name__=="__main__":
    import argparse
    ap=argparse.ArgumentParser(); ap.add_argument("out"); ap.add_argument("kw",nargs="*")
    ar=ap.parse_args()
    kw={}
    for x in ar.kw:
        k,v=x.split("="); kw[k]=int(v) if v.lstrip("-").isdigit() else v
    open(ar.out,"w").write(gen(**kw))
```

```python
import sys
NAME="parallel_sum__gqa_block_cached__geglu_ffn__decode_kernel"
HDR=open("parallel_sum__gqa_block_cached__geglu_ffn__decode.s.ref").read().split("; Override launch")[0]

QP_OFF=0x0; F1_OFF=128*1024; ST_OFF=F1_OFF+108*1024; F2_OFF=260*1024; Y_OFF=F2_OFF+108*5120; WS_SIZE=Y_OFF+256*2560
NROOT=20; ROOT_KB=13
assert ST_OFF+16*1024<=NROOT*ROOT_KB*1024<=F2_OFF
STAMP_OFF=0x8000000
LQ=0; LF=256; LO=512; LO_STR=544; LY=LO+8*LO_STR; LY_STR=2560; LDS_BYTES=LY+8*LY_STR
LOG2E=0x3fb8aa3b
SCALE=0x3db504f3
DPPF="row_mask:0xf bank_mask:0xf"

class G:
    def __init__(s): s.o=[]; s.vm=[]
    def a(s,x): s.o.append("    "+x)
    def lab(s,x): s.o.append(x+":")
    def vmem(s,tag,x): s.a(x); s.vm.append(tag)
    def vreset(s): s.vm=[]
    def wait(s,tag):
        i=len(s.vm)-1-s.vm[::-1].index(tag)
        n=len(s.vm)-1-i
        assert n<=63
        s.a(f"s_waitcnt vmcnt({n})")

def mix(A,B):
    out=[]; ia=ib=0
    while ia<len(A) or ib<len(B):
        if ib>=len(B) or (ia<len(A) and ia*len(B)<=ib*len(A)): out.append(A[ia]); ia+=1
        else: out.append(B[ib]); ib+=1
    return out

def gen(KNT=1, WNT=1, ONT=1, stamps=0, NPRE0=8, UB=39, NEX=8, SLEEP0=0, SLEEP1=16, SLEEP2=8, PAD=0, PRIO=1, OLAST=0):
    g=G(); a=g.a
    knt=" nt" if KNT else ""; wnt=" nt" if WNT else ""; ont=" nt" if ONT else ""
    def stamp(k,mode=1):
        if stamps==mode or (stamps and k in (0,1,2,7) and mode==1): a(f"s_memrealtime s[{84+2*k}:{85+2*k}]")
    def prio(p):
        if PRIO: a(f"s_setprio {p}")
    def xrow(op,v,t,steps=(16,32)):
        for st in steps:
            a(f"v_mov_b32 v{t}, v{v}"); a("s_nop 1"); a(f"v_permlane{st}_swap_b32 v{v}, v{t}"); a(f"{op} v{v}, v{v}, v{t}")
    def dpp(op,v,ctrl,nop=True):
        if nop: a("s_nop 1")
        a(f"{op}_dpp v{v}, v{v}, v{v} {ctrl} {DPPF}")
    def srd(d,p,size):
        a(f"s_mov_b32 s{d}, s{p}"); a(f"s_mov_b32 s{d+1}, s{p+1}"); a(f"s_mov_b32 s{d+2}, {size:#x}"); a(f"s_mov_b32 s{d+3}, 0x20000")
    def allvalid(regs,t):
        if len(regs)==2: a(f"v_max_u32 v{t}, v{regs[0]}, v{regs[1]}"); k=2
        else: a(f"v_max3_u32 v{t}, v{regs[0]}, v{regs[1]}, v{regs[2]}"); k=3
        while k+1<len(regs):
            a(f"v_max3_u32 v{t}, v{t}, v{regs[k]}, v{regs[k+1]}"); k+=2
        if k<len(regs): a(f"v_max_u32 v{t}, v{t}, v{regs[k]}")
        a(f"v_cmp_eq_u32 vcc, -1, v{t}")
        a("s_cmp_eq_u64 vcc, 0")
    def retry(lab,sl,lim=0x10000):
        a(f"s_sleep {sl}"); a("s_add_u32 s80, s80, 1"); a(f"s_cmp_lt_u32 s80, {lim:#x}"); a(f"s_cbranch_scc1 {lab}")
    def rootpoll(tag,first_issued=False):
        a("s_mov_b32 s80, 0")
        a(f"v_min_u32 v17, {NROOT-1}, v1"); a("v_lshlrev_b32 v17, 2, v17")
        if first_issued: a(f"s_branch L_rp_chk{tag}")
        g.lab(f"L_rp{tag}")
        a("buffer_load_dword v16, v17, s[44:47], 0 offen sc1")
        a("s_waitcnt vmcnt(0)")
        g.lab(f"L_rp_chk{tag}")
        a("v_cmp_eq_u32 vcc, 0, v16"); a("s_cmp_eq_u64 vcc, 0"); a(f"s_cbranch_scc1 L_rp_ok{tag}")
        retry(f"L_rp{tag}",SLEEP1)
        g.lab(f"L_rp_ok{tag}")
    def masks(t0,t1):
        a(f"v_and_b32 v{t0}, 1, v1"); a(f"v_lshlrev_b32 v{t0}, 4, v{t0}"); a(f"v_mov_b32 v{t1}, 0xffff"); a(f"v_lshlrev_b32 v{t0}, v{t0}, v{t1}")
        a(f"v_bfe_u32 v{t1}, v1, 1, 2")
        for r in range(4):
            a(f"v_cmp_eq_u32 vcc, {r}, v{t1}"); a("s_nop 1"); a(f"v_cndmask_b32 v{6+r}, 0, v{t0}, vcc")
    def sentinel4(b):
        for k in range(4): a(f"v_mov_b32 v{b+k}, -1")
    def yslot(d,t):
        a(f"s_lshl_b32 s{d}, s58, 7"); a(f"s_lshl_b32 s{t}, s57, 2"); a(f"s_add_u32 s{d}, s{d}, s{t}"); a(f"s_add_u32 s{d}, s{d}, s59"); a(f"s_mul_i32 s{d}, s{d}, 2560"); a(f"s_add_u32 s{d}, s{d}, {Y_OFF}")
    def pkadd(d,s):
        for k in range(2): a(f"v_pk_add_f32 v[{d+2*k}:{d+2*k+1}], v[{d+2*k}:{d+2*k+1}], v[{s+2*k}:{s+2*k+1}]")
    def scatter_reduce(b,dst):
        a("s_nop 1")
        a(f"v_add_f32_dpp v36, v{b}, v{b} row_ror:8 row_mask:0xf bank_mask:0x3")
        a(f"v_add_f32_dpp v36, v{b+1}, v{b+1} row_ror:8 row_mask:0xf bank_mask:0xc")
        a(f"v_add_f32_dpp v37, v{b+2}, v{b+2} row_ror:8 row_mask:0xf bank_mask:0x3")
        a(f"v_add_f32_dpp v37, v{b+3}, v{b+3} row_ror:8 row_mask:0xf bank_mask:0xc")
        a(f"v_add_f32_dpp v{dst}, v36, v36 row_shl:4 row_mask:0xf bank_mask:0x5")
        a("s_nop 0")
        a(f"v_add_f32_dpp v{dst}, v37, v37 row_shr:4 row_mask:0xf bank_mask:0xa")
        xrow("v_add_f32",dst,36)
    SL=lambda i: 48+4*i
    def r4(b): return f"v[{b}:{b+3}]"
    o=g.o
    o.append(HDR.rstrip("\n"))
    o.append(f"; @launch grid=(256,1,1) block=(512,1,1) lds={LDS_BYTES}")
    o.append('.amdgcn_target "amdgcn-amd-amdhsa--gfx950"'); o.append(".text"); o.append(f".globl {NAME}"); o.append(".p2align 8"); o.append(f".type {NAME},@function"); o.append(f"{NAME}:")
    a("s_cmp_ge_u32 s2, 256"); a("s_cbranch_scc1 L_end")
    a("s_load_dwordx16 s[4:19], s[0:1], 0"); a("s_load_dwordx8 s[20:27], s[0:1], 64")
    stamp(0)
    if PAD: a("s_memrealtime s[100:101]")
    a("v_lshrrev_b32 v3, 6, v0"); a("v_and_b32 v1, 63, v0"); a("v_readfirstlane_b32 s56, v3"); a("v_lshlrev_b32 v2, 4, v1")
    a("s_and_b32 s57, s2, 7"); a("s_lshl_b32 s57, s57, 2"); a("s_lshr_b32 s61, s2, 3"); a("s_and_b32 s62, s61, 3"); a("s_add_u32 s57, s57, s62")
    a("s_lshr_b32 s58, s2, 7")
    a("s_lshr_b32 s59, s2, 5"); a("s_and_b32 s59, s59, 3")
    a("s_lshl_b32 s60, s61, 2"); a("s_lshr_b32 s62, s2, 1"); a("s_and_b32 s62, s62, 3"); a("s_or_b32 s60, s60, s62")
    a("s_lshl_b32 s81, s58, 5"); a("s_add_u32 s81, s81, s57")
    a("s_lshl_b32 s64, s81, 20"); a("s_lshl_b32 s62, s59, 18"); a("s_add_u32 s64, s64, s62"); a("s_lshl_b32 s62, s56, 15"); a("s_add_u32 s64, s64, s62")
    for k in range(1,8): a(f"s_add_u32 s{64+k}, s64, {4096*k}")
    a("s_mov_b32 s82, 0"); a("s_mov_b32 s83, 0"); a("s_mov_b32 s63, 0"); a("s_mov_b32 s3, 0")
    a("v_lshrrev_b32 v3, 4, v1"); a("v_and_b32 v4, 15, v1")
    a("s_waitcnt lgkmcnt(0)")
    srd(28,6,64<<20); srd(40,26,WS_SIZE); srd(44,24,256)
    a("s_cmp_ge_u32 s56, 3"); a("s_cbranch_scc1 L_pref")
    prio(3)
    sentinel4(48)
    a("s_cmp_eq_u32 s56, 2"); a("s_cbranch_scc1 L_w2init")
    a("s_and_b32 s61, s2, 1"); a("s_cmp_eq_u32 s61, s56"); a("s_cbranch_scc0 L_sp")
    a("s_xor_b32 s3, s56, 1")
    a("s_branch L_pref")
    g.lab("L_sp")
    a("s_cmp_eq_u32 s56, 0"); a("s_cbranch_scc1 L_w0_addr")
    a(f"s_cmp_ge_u32 s60, {NROOT}"); a("s_cbranch_scc1 L_w1_addr")
    a(f"s_mul_i32 s61, s60, {ROOT_KB*1024}")
    for k in range(ROOT_KB):
        if k%4==0 and k: a("s_add_u32 s61, s61, 4096")
        a(f"buffer_store_dwordx4 v[48:51], v2, s[40:43], s61 offen offset:{1024*(k%4)} sc1")
    a("s_lshl_b32 s62, s60, 2"); a("v_mov_b32 v52, 1"); a("v_mov_b32 v53, s62")
    a("s_mov_b64 exec, 1")
    stamp(3,2)
    a("s_waitcnt vmcnt(0)")
    stamp(4,2)
    a("buffer_store_dword v52, v53, s[44:47], 0 offen sc1")
    a("s_mov_b64 exec, -1")
    a("s_barrier")
    if stamps==2:
        a("s_waitcnt vmcnt(0)"); stamp(5,2)
    a("s_mov_b32 s82, 1")
    a("s_branch L_pref")
    g.lab("L_w2init")
    yslot(61,62)
    a("buffer_store_dwordx4 v[48:51], v2, s[40:43], s61 offen sc1")
    a("buffer_store_dwordx4 v[48:51], v2, s[40:43], s61 offen offset:1024 sc1")
    a("s_mov_b64 exec, 0xffffffff")
    a("buffer_store_dwordx4 v[48:51], v2, s[40:43], s61 offen offset:2048 sc1")
    a("s_mov_b64 exec, -1")
    g.lab("L_pref")
    prio(2)
    g.vreset()
    def kvload(kind,i,slot):
        srdn="s[28:31]" if kind=="K" else "s[32:35]"
        g.vmem((kind,i), f"buffer_load_dwordx4 {r4(SL(slot))}, v2, {srdn}, s{64+i//4} offen offset:{(i%4)*1024}{knt}")
    Vs=[("V",i) for i in range(32)]; Os=[("O",i) for i in range(20)]
    R=mix(Vs,Os[:20-OLAST])+Os[20-OLAST:]
    slot_of={}
    for i in range(32): slot_of[("K",i)]=i
    for k,t in enumerate(R): slot_of[t]=(32+k) if k<20 else k-20
    def sload(t):
        k=slot_of[t]
        if t[0] in "KV": kvload(t[0],t[1],k)
        else:
            aa,cb=divmod(t[1],5)
            so="s72" if aa<2 else "s73"
            g.vmem(t, f"buffer_load_dwordx4 {r4(SL(k))}, v5, s[36:39], {so} offen offset:{(aa%2)*1280+cb*256}{ont}")
    for i in range(32):
        if i==NPRE0:
            a("s_bitcmp1_b32 s82, 0"); a("s_cbranch_scc1 L_nobar0")
            a("v_lshlrev_b32 v36, 2, v1"); a("v_mov_b32 v37, -1"); a(f"ds_write_b32 v36, v37 offset:{LQ}"); a("s_waitcnt lgkmcnt(0)")
            a("s_barrier"); g.lab("L_nobar0")
        sload(("K",i))
        a("s_nop 0")
    masks(36,37)
    a("s_cmp_lg_u32 s3, 0"); a("s_cbranch_scc1 L_role")
    g.lab("L_extras")
    prio(1)
    a("v_mov_b32 v45, 0"); a("v_mov_b32 v23, 0")
    srd(32,8,64<<20); srd(36,12,4096*640*2)
    a("v_mul_u32_u24 v5, 5120, v3"); a("v_lshl_add_u32 v5, v4, 4, v5")
    a("s_lshl_b32 s72, s57, 7"); a("s_lshl_b32 s62, s56, 4"); a("s_add_u32 s72, s72, s62"); a("s_mul_i32 s72, s72, 1280"); a("s_add_u32 s73, s72, 2560")
    for t in R[:NEX]:
        sload(t); a("s_nop 0")
    stamp(1)
    a(f"v_lshlrev_b32 v36, 4, v4")
    a("s_mov_b32 s80, 0")
    g.lab("L_qwait")
    a(f"ds_read_b128 v[10:13], v36 offset:{LQ}")
    a("s_waitcnt lgkmcnt(0)")
    allvalid([10,11,12,13],37)
    a("s_cbranch_scc1 L_qok")
    retry("L_qwait",2,0x100000)
    g.lab("L_qok")
    stamp(2)
    prio(3)
    a("s_mov_b32 s74, 0x%x"%SCALE); a("s_mov_b32 s75, 0xffff0000")
    P=28; TT=36
    for d in range(4):
        g.wait(("K",8*d+7))
        for j in range(4):
            for t in range(8):
                src2="0" if j==0 else f"v{P+t}"
                a(f"v_dot2_f32_bf16 v{P+t}, v{SL(8*d+t)+j}, v{10+j}, {src2}")
        for h in range(2):
            b=P+4*h
            a(f"v_add_f32_dpp v{TT+2*h}, v{b}, v{b} row_ror:8 row_mask:0xf bank_mask:0x3")
            a(f"v_add_f32_dpp v{TT+2*h}, v{b+1}, v{b+1} row_ror:8 row_mask:0xf bank_mask:0xc")
            a(f"v_add_f32_dpp v{TT+2*h+1}, v{b+2}, v{b+2} row_ror:8 row_mask:0xf bank_mask:0x3")
            a(f"v_add_f32_dpp v{TT+2*h+1}, v{b+3}, v{b+3} row_ror:8 row_mask:0xf bank_mask:0xc")
        for h in range(2):
            a(f"v_add_f32_dpp v{TT+4+h}, v{TT+2*h}, v{TT+2*h} row_shl:4 row_mask:0xf bank_mask:0x5")
            a(f"v_add_f32_dpp v{TT+4+h}, v{TT+2*h+1}, v{TT+2*h+1} row_shr:4 row_mask:0xf bank_mask:0xa")
        a("s_nop 0")
        for qp in ("[1,0,3,2]","[2,3,0,1]"):
            for h in range(2): a(f"v_add_f32_dpp v{TT+4+h}, v{TT+4+h}, v{TT+4+h} quad_perm:{qp} {DPPF}")
            a("s_nop 0")
        a(f"v_cvt_pk_bf16_f32 v{TT}, v{TT+4}, v{TT+5}")
        a(f"v_lshlrev_b32 v{TT+1}, 16, v{TT}"); a(f"v_and_b32 v{TT+2}, s75, v{TT}")
        a(f"v_mul_f32 v{TT+1}, s74, v{TT+1}"); a(f"v_mul_f32 v{TT+2}, s74, v{TT+2}")
        a(f"v_cvt_pk_bf16_f32 v{TT}, v{TT+1}, v{TT+2}")
        a(f"v_lshlrev_b32 v{14+2*d}, 16, v{TT}"); a(f"v_and_b32 v{15+2*d}, s75, v{TT}")
    a("v_max3_f32 v36, v14, v15, v16"); a("v_max3_f32 v37, v17, v18, v19"); a("v_max3_f32 v36, v36, v20, v21"); a("v_max_f32 v36, v36, v37")
    dpp("v_max_f32",36,"row_ror:4"); dpp("v_max_f32",36,"row_ror:8"); xrow("v_max_f32",36,37)
    a("s_mov_b32 s74, 0x%x"%LOG2E)
    a("v_mul_f32 v38, s74, v36")
    for k in range(8): a(f"v_fma_f32 v{14+k}, v{14+k}, s74, -v38")
    for k in range(8): a(f"v_exp_f32 v{14+k}, v{14+k}")
    a("s_nop 0")
    a("v_add_f32 v39, v14, v15"); a("v_add_f32 v36, v16, v17"); a("v_add_f32 v39, v39, v18"); a("v_add_f32 v36, v36, v19"); a("v_add_f32 v39, v39, v20"); a("v_add_f32 v36, v36, v21"); a("v_add_f32 v39, v39, v36")
    for k in range(8): a(f"v_cvt_pk_bf16_f32 v{14+k}, v{14+k}, v{14+k}")
    dpp("v_add_f32",39,"row_ror:4",nop=False); dpp("v_add_f32",39,"row_ror:8"); xrow("v_add_f32",39,37)
    a("v_min_u32 v38, -2, v38"); a("v_min_u32 v39, -2, v39")
    a("s_lshl_b32 s61, s81, 5"); a("s_lshl_b32 s62, s59, 3"); a("s_add_u32 s61, s61, s62"); a("s_add_u32 s61, s61, s56"); a("s_lshl_b32 s61, s61, 3"); a(f"s_add_u32 s61, s61, {ST_OFF}")
    a("v_mov_b32 v36, 0")
    a("s_mov_b64 exec, 1")
    g.vmem("st","buffer_store_dwordx2 v[38:39], v36, s[40:43], s61 offen sc1")
    a("s_mov_b64 exec, -1")
    stamp(3)
    prio(0)
    for t in R[NEX:]:
        sload(t); a("s_nop 0")
    beta=[0,2,1,3]
    def buildA(i):
        A=28+4*(i%2)
        for r in range(4):
            a(f"v_and_b32_dpp v{A+r}, v{14+i//4}, v{6+r} row_newbcast:{4*beta[i%4]} {DPPF}")
    a("v_lshlrev_b32 v36, 5, v4"); a("v_lshl_add_u32 v36, v3, 4, v36")
    a(f"s_mul_i32 s61, s56, {LO_STR}"); a("v_add_u32 v41, s61, v36")
    a(f"s_mul_i32 s61, s56, {LY_STR}"); a("v_add_u32 v42, s61, v36")
    a("v_and_b32 v36, 7, v1"); a(f"v_mul_u32_u24 v40, {LO_STR}, v36"); a("v_lshl_add_u32 v40, v3, 4, v40"); a("s_lshl_b32 s61, s56, 6"); a("v_add_u32 v40, s61, v40")
    a("s_lshl_b32 s61, s59, 5"); a("v_lshl_add_u32 v43, v36, 2, s61")
    buildA(0)
    for i in range(32):
        if i<31: buildA(i+1)
        g.wait(("V",i))
        A=28+4*(i%2)
        C="0" if i==0 else "v[24:27]"
        a(f"v_mfma_f32_16x16x32_bf16 v[24:27], {r4(A)}, {r4(SL(slot_of[('V',i)]))}, {C}")
    a("s_mov_b64 exec, 0xffffffff")
    a("s_nop 6")
    a(f"ds_write_b128 v41, v[24:27] offset:{LO}")
    a("s_mov_b64 exec, -1")
    stamp(4)
    a("s_cmp_eq_u32 s56, 2"); a("s_cbranch_scc1 L_w2stats")
    a("s_cmp_eq_u32 s56, 3"); a("s_cbranch_scc1 L_w3pre")
    g.lab("L_bar2")
    a("s_waitcnt lgkmcnt(0)")
    a("s_barrier")
    stamp(5)
    a(f"ds_read_b128 v[36:39], v40 offset:{LO}")
    a(f"ds_read_b32 v44, v43 offset:{LF}")
    a("s_waitcnt lgkmcnt(0)")
    for k in range(4): a(f"v_mul_f32 v{36+k}, v44, v{36+k}")
    for ctrl in ("quad_perm:[1,0,3,2]","quad_perm:[2,3,0,1]","row_half_mirror"):
        for k in range(4): a(f"v_add_f32_dpp v{36+k}, v{36+k}, v{36+k} {ctrl} {DPPF}")
    for k in range(4): a(f"v_cvt_pk_bf16_f32 v{36+k}, v{36+k}, v{36+k}")
    vslots=sorted(slot_of[("V",i)] for i in range(32))
    YAs=vslots[0:5]; ABs=vslots[5:9]
    for k in range(4):
        for r in range(4): a(f"v_and_b32 v{SL(ABs[k])+r}, v{36+k}, v{6+r}")
    a("s_waitcnt vmcnt(0)")
    a("s_nop 0")
    for aa in range(4):
        for cb in range(5):
            C="0" if aa==0 else r4(SL(YAs[cb]))
            a(f"v_mfma_f32_16x16x32_bf16 {r4(SL(YAs[cb]))}, {r4(SL(ABs[aa]))}, {r4(SL(slot_of[('O',aa*5+cb)]))}, {C}")
    a("s_mov_b64 exec, 0xffffffff")
    a("s_nop 2")
    for cb in range(5):
        a(f"ds_write_b128 v42, {r4(SL(YAs[cb]))} offset:{LY+512*cb}")
        if cb<4: a("s_nop 0")
    a("s_mov_b64 exec, -1")
    a("v_lshlrev_b32 v36, 4, v0")
    yslot(61,62)
    a("s_waitcnt lgkmcnt(0)")
    a("s_barrier")
    stamp(6)
    a("s_cmp_ge_u32 s56, 3"); a("s_cbranch_scc1 L_fin")
    a("v_cmp_gt_u32 vcc, 160, v0"); a("s_and_saveexec_b64 s[76:77], vcc")
    for w in range(8): a(f"ds_read_b128 {r4(SL(w))}, v36 offset:{LY+LY_STR*w}")
    a("s_waitcnt lgkmcnt(0)" if stamps else "s_waitcnt lgkmcnt(4)")
    pkadd(SL(0),SL(1)); pkadd(SL(2),SL(3)); pkadd(SL(0),SL(2))
    a("s_waitcnt lgkmcnt(0)")
    pkadd(SL(4),SL(5)); pkadd(SL(6),SL(7)); pkadd(SL(4),SL(6)); pkadd(SL(0),SL(4))
    for k in range(4): a(f"v_min_u32 v{SL(0)+k}, -2, v{SL(0)+k}")
    a(f"buffer_store_dwordx4 {r4(SL(0))}, v36, s[40:43], s61 offen sc1")
    a("s_mov_b64 exec, -1")
    a("s_branch L_done")
    g.lab("L_fin")
    a("s_cmp_eq_u32 s83, 0"); a("s_cbranch_scc1 L_done")
    a("s_mov_b32 s80, 0")
    srd(52,22,2560)
    g.lab("L_fin_poll")
    a("s_mov_b32 s62, s63")
    for i in range(8):
        a(f"buffer_load_dwordx4 {r4(SL(i))}, v45, s[40:43], s62 offen sc1")
        if i<7: a("s_add_u32 s62, s62, 40960")
    a("s_waitcnt vmcnt(0)")
    allvalid(list(range(SL(0),SL(8))),36)
    a("s_cbranch_scc1 L_fin_ok")
    retry("L_fin_poll",4)
    g.lab("L_fin_ok")
    for i in range(1,8): pkadd(SL(0),SL(i))
    scatter_reduce(SL(0),38)
    a("v_cvt_pk_bf16_f32 v38, v38, v38"); a("v_lshlrev_b32 v38, 16, v38"); a("v_add_f32 v38, v46, v38")
    a("v_cvt_pk_bf16_f32 v38, v38, v38"); a("v_lshlrev_b32 v38, 16, v38"); a("v_add_f32 v38, v47, v38")
    a("v_cvt_pk_bf16_f32 v38, v38, v38")
    a("s_mov_b64 exec, 0xffff")
    a("buffer_store_short v38, v23, s[52:55], 0 offen")
    a("s_mov_b64 exec, -1")
    g.lab("L_done")
    if PAD:
        g.lab("L_pad")
        a("s_memrealtime s[98:99]"); a("s_waitcnt lgkmcnt(0)"); a("s_sub_u32 s98, s98, s100"); a(f"s_cmp_lt_u32 s98, {PAD*100}"); a("s_cbranch_scc1 L_pad")
    if stamps:
        stamp(7)
        a("s_waitcnt lgkmcnt(0)")
        a(f"s_add_u32 s52, s26, {STAMP_OFF}"); a("s_addc_u32 s53, s27, 0"); a("s_mov_b32 s54, 0x100000"); a("s_mov_b32 s55, 0x20000")
        for k in range(8): a(f"v_mov_b32 v{48+k}, s{84+2*k}")
        a("s_lshl_b32 s61, s2, 3"); a("s_add_u32 s61, s61, s56"); a("s_lshl_b32 s61, s61, 5")
        a("v_mov_b32 v36, 0"); a("s_mov_b64 exec, 1")
        a("buffer_store_dwordx4 v[48:51], v36, s[52:55], s61 offen"); a("buffer_store_dwordx4 v[52:55], v36, s[52:55], s61 offen offset:16")
    g.lab("L_end")
    a("s_endpgm")

    g.lab("L_w2stats")
    prio(3)
    a("v_and_b32 v36, 31, v1"); a("v_lshlrev_b32 v44, 3, v36"); a("v_lshlrev_b32 v45, 2, v36")
    a("s_lshl_b32 s61, s81, 8"); a(f"s_add_u32 s61, s61, {ST_OFF}")
    a("s_mov_b32 s80, 0")
    g.lab("L_w2_poll")
    a("buffer_load_dwordx2 v[36:37], v44, s[40:43], s61 offen sc1")
    a("s_waitcnt vmcnt(0)")
    allvalid([36,37],38)
    a("s_cbranch_scc1 L_w2_ok")
    retry("L_w2_poll",8)
    g.lab("L_w2_ok")
    a("v_mov_b32 v38, v36")
    for ctrl in ("quad_perm:[1,0,3,2]","quad_perm:[2,3,0,1]","row_half_mirror","row_mirror"): dpp("v_max_f32",38,ctrl)
    xrow("v_max_f32",38,39,steps=(16,))
    a("v_sub_f32 v36, v36, v38"); a("v_exp_f32 v36, v36"); a("s_nop 0"); a("v_mul_f32 v37, v36, v37")
    for ctrl in ("quad_perm:[1,0,3,2]","quad_perm:[2,3,0,1]","row_half_mirror","row_mirror"): dpp("v_add_f32",37,ctrl)
    xrow("v_add_f32",37,39,steps=(16,))
    a("v_rcp_f32 v37, v37"); a("s_nop 0"); a("v_mul_f32 v36, v36, v37")
    a(f"ds_write_b32 v45, v36 offset:{LF}")
    stamp(6,3)
    a("s_branch L_bar2")

    g.lab("L_w3pre")
    a("s_bitcmp0_b32 s2, 0"); a("s_cbranch_scc1 L_bar2")
    a("s_cmp_lt_u32 s60, 48"); a("s_cbranch_scc1 L_bar2")
    prio(3)
    a("s_mov_b32 s83, 1")
    a("s_sub_u32 s60, s60, 48")
    a("s_cmp_ge_u32 s60, 40"); a("s_cselect_b32 s61, 1, 0"); a("s_mul_i32 s62, s61, 40"); a("s_sub_u32 s62, s60, s62")
    a("s_mul_i32 s63, s61, 327680"); a("s_lshl_b32 s74, s62, 6"); a("s_add_u32 s63, s63, s74"); a(f"s_add_u32 s63, s63, {Y_OFF}")
    a("s_lshl_b32 s78, s61, 13"); a(f"s_add_u32 s78, s78, {ST_OFF+16}")
    a("v_lshrrev_b32 v36, 2, v1"); a("v_and_b32 v37, 3, v1")
    a("v_mul_u32_u24 v45, 2560, v36"); a("v_lshl_add_u32 v45, v37, 4, v45")
    a("v_mul_u32_u24 v44, 5120, v36"); a("v_lshl_add_u32 v44, v37, 4, v44")
    a("s_mul_i32 s75, s61, 2560"); a("s_add_u32 s75, s75, s74"); a(f"s_add_u32 s75, s75, {F2_OFF}")
    a("v_and_b32 v38, 1, v36"); a("v_lshlrev_b32 v38, 1, v38"); a("v_bfe_u32 v39, v36, 1, 1"); a("v_or_b32 v38, v38, v39")
    a("v_lshl_add_u32 v38, v37, 2, v38"); a("v_lshlrev_b32 v38, 1, v38")
    a("s_mul_i32 s61, s61, 1280"); a("s_lshl_b32 s62, s62, 5"); a("s_add_u32 s61, s61, s62"); a("v_add_u32 v23, s61, v38")
    srd(48,4,2560)
    a("buffer_load_ushort v46, v23, s[48:51], 0 offen")
    a("v_cmp_gt_u32 vcc, 12, v36"); a("v_mov_b32 v39, 0x7ffffff0"); a("s_nop 0"); a("v_cndmask_b32 v22, v39, v44, vcc")
    a("v_lshlrev_b32 v28, 10, v1"); a("v_lshlrev_b32 v30, 6, v1")
    a("v_cmp_gt_u32 vcc, 44, v1"); a(f"s_mov_b32 s61, {F1_OFF}"); a(f"s_mov_b32 s62, {F1_OFF+65536}"); a("v_cndmask_b32 v29, v39, v28, vcc"); a("s_add_u32 s79, s78, 4096")
    a("s_mov_b32 s80, 0")
    g.lab("L_w3_chk")
    a("buffer_load_dword v32, v28, s[40:43], s61 offen sc1")
    a("buffer_load_dword v33, v29, s[40:43], s62 offen sc1")
    a("buffer_load_dword v34, v30, s[40:43], s78 offen sc1")
    a("buffer_load_dword v35, v30, s[40:43], s79 offen sc1")
    a("s_waitcnt vmcnt(0)")
    allvalid([32,33,34,35],36)
    a("s_cbranch_scc1 L_w3_chk_ok")
    retry("L_w3_chk",16)
    g.lab("L_w3_chk_ok")
    a("s_mov_b32 s80, 0")
    SL2=lambda i: SL(vslots[i])
    g.lab("L_w3_poll")
    a("s_mov_b32 s62, s75")
    for i in range(7):
        vo="v44" if i<6 else "v22"
        a(f"buffer_load_dwordx4 {r4(SL2(i))}, {vo}, s[40:43], s62 offen sc1")
        if i<6: a("s_add_u32 s62, s62, 81920")
    a("s_waitcnt vmcnt(0)")
    allvalid([SL2(i)+k for i in range(7) for k in range(4)],36)
    a("s_cbranch_scc1 L_w3_ok")
    retry("L_w3_poll",16)
    g.lab("L_w3_ok")
    for i in range(1,7): pkadd(SL2(0),SL2(i))
    scatter_reduce(SL2(0),47)
    a("v_cvt_pk_bf16_f32 v47, v47, v47"); a("v_lshlrev_b32 v47, 16, v47"); a("v_lshlrev_b32 v46, 16, v46")
    stamp(6,3)
    a("s_branch L_bar2")

    g.lab("L_w1_addr")
    a(f"s_sub_u32 s60, s60, {NROOT}")
    a("s_and_b32 s63, s60, 3"); a("s_lshr_b32 s74, s60, 2")
    a("s_mov_b32 s3, 3")
    a("s_mul_i32 s61, s60, 5120"); a(f"s_add_u32 s61, s61, {F2_OFF}"); a("s_add_u32 s62, s61, 4096")
    for k in range(4): a(f"buffer_store_dwordx4 v[48:51], v2, s[40:43], s61 offen offset:{1024*k} sc1")
    a("buffer_store_dwordx4 v[48:51], v2, s[40:43], s62 offen sc1")
    a("v_and_b32 v36, 8, v1"); a("v_cmp_eq_u32 vcc, 0, v36")
    a("v_mov_b32 v36, s18"); a("v_mov_b32 v37, s16"); a("v_cndmask_b32 v10, v36, v37, vcc")
    a("v_mov_b32 v36, s19"); a("v_mov_b32 v37, s17"); a("v_cndmask_b32 v11, v36, v37, vcc")
    a("s_mul_i32 s61, s63, 552960"); a("s_lshl_b32 s62, s74, 7"); a("s_add_u32 s61, s61, s62")
    a("s_mov_b32 s62, 138240"); a("v_mul_lo_u32 v36, v3, s62"); a("v_and_b32 v37, 7, v1"); a("v_lshl_add_u32 v36, v37, 4, v36"); a("v_add_u32 v36, s61, v36")
    a("s_mov_b32 s78, 3456"); a("s_mov_b32 s79, 0")
    a("s_lshl_b32 s75, s60, 10"); a(f"s_add_u32 s75, s75, {F1_OFF}")
    a("s_branch L_unit")
    g.lab("L_w0_addr")
    a("s_and_b32 s63, s60, 3"); a("s_lshr_b32 s74, s60, 2")
    a("s_mov_b32 s3, 2")
    a("v_mov_b32 v10, s10"); a("v_mov_b32 v11, s11")
    a("s_mul_i32 s61, s63, 1310720"); a("s_lshl_b32 s62, s74, 8"); a("s_add_u32 s61, s61, s62")
    a("s_mov_b32 s62, 327680"); a("v_mul_lo_u32 v36, v3, s62"); a("v_lshl_add_u32 v36, v4, 4, v36"); a("v_add_u32 v36, s61, v36")
    a("s_mov_b32 s78, 8192"); a("s_mov_b32 s79, 0")
    a("s_lshl_b32 s75, s60, 10"); a(f"s_add_u32 s75, s75, {QP_OFF}")
    g.lab("L_unit")
    g.vreset()
    srd(48,4,2560)
    a("v_mov_b32 v37, 0"); a("v_lshl_add_u64 v[10:11], v[36:37], 0, v[10:11]")
    a("v_bfe_u32 v36, v1, 3, 1"); a("v_mul_u32_u24 v36, 1280, v36")
    a("v_and_b32 v37, 7, v1"); a("v_lshl_add_u32 v37, v3, 3, v37"); a("v_lshl_add_u32 v37, v37, 3, v36")
    for k in range(5): g.vmem(("xs",k),f"buffer_load_dwordx2 v[{14+2*k}:{15+2*k}], v37, s[48:51], 0 offen offset:{256*k}")
    a("v_mul_u32_u24 v12, 80, v3"); a("v_add_u32 v12, v12, v36"); a("s_mul_i32 s61, s63, 320")
    for k in range(5): g.vmem(("xc",k),f"buffer_load_dwordx4 {r4(28+4*k)}, v12, s[48:51], s61 offen offset:{16*k}")
    for i in range(40):
        if i==UB: a("s_barrier")
        g.vmem(("w",i),f"global_load_dwordx4 {r4(SL(i))}, v[10:11], off{wnt}")
        if i<39: a("v_lshl_add_u64 v[10:11], v[10:11], 0, s[78:79]")
    a(f"v_min_u32 v12, {NROOT-1}, v1"); a("v_lshlrev_b32 v12, 2, v12")
    g.vmem("root","buffer_load_dword v5, v12, s[44:47], 0 offen sc1")
    masks(12,13)
    a("s_mov_b32 s61, 0xffff0000")
    g.wait(("xs",4))
    U=208
    for k in range(10):
        a(f"v_lshlrev_b32 v{U+2*k}, 16, v{14+k}"); a(f"v_and_b32 v{U+2*k+1}, s61, v{14+k}")
    a(f"v_add_f32 v12, v{U}, v{U+1}"); a(f"v_add_f32 v13, v{U+2}, v{U+3}")
    for k in range(4,20,2):
        a(f"v_add_f32 v12, v12, v{U+k}"); a(f"v_add_f32 v13, v13, v{U+k+1}")
    a("v_add_f32 v12, v12, v13")
    def red32(v,t):
        for ctrl in ("quad_perm:[1,0,3,2]","quad_perm:[2,3,0,1]","row_half_mirror"): dpp("v_add_f32",v,ctrl)
        xrow("v_add_f32",v,t)
    red32(12,13)
    a("s_mov_b32 s62, 0x3acccccd")
    a("v_mul_f32 v12, s62, v12")
    for k in range(20): a(f"v_sub_f32 v{U+k}, v{U+k}, v12")
    a(f"v_mul_f32 v14, v{U}, v{U}"); a(f"v_mul_f32 v15, v{U+1}, v{U+1}")
    for k in range(2,20,2):
        a(f"v_fmac_f32 v14, v{U+k}, v{U+k}"); a(f"v_fmac_f32 v15, v{U+k+1}, v{U+k+1}")
    a("v_add_f32 v14, v14, v15")
    red32(14,13)
    a("v_mul_f32 v14, s62, v14")
    a("v_cvt_pk_bf16_f32 v13, v12, v14"); a("v_lshlrev_b32 v12, 16, v13"); a("v_and_b32 v14, s61, v13")
    a("v_add_f32 v14, 0x3727c5ac, v14"); a("v_cvt_pk_bf16_f32 v14, v14, v14"); a("v_and_b32 v14, s61, v14")
    a("v_sqrt_f32 v14, v14"); a("s_nop 0"); a("v_cvt_pk_bf16_f32 v14, v14, v14"); a("v_and_b32 v14, s61, v14")
    a("v_rcp_f32 v14, v14")
    g.wait(("xc",4))
    stamp(3,2)
    for k in range(20):
        a(f"v_lshlrev_b32 v16, 16, v{28+k}"); a(f"v_and_b32 v17, s61, v{28+k}")
        a("v_sub_f32 v16, v16, v12"); a("v_sub_f32 v17, v17, v12")
        a("v_cvt_pk_bf16_f32 v18, v16, v17")
        a("v_lshlrev_b32 v16, 16, v18"); a("v_and_b32 v17, s61, v18")
        a("v_mul_f32 v16, v16, v14"); a("v_mul_f32 v17, v17, v14")
        a(f"v_cvt_pk_bf16_f32 v{U+2*k}, v16, v16"); a(f"v_cvt_pk_bf16_f32 v{U+2*k+1}, v17, v17")
    def buildX(i):
        A=248+4*(i%2)
        for r in range(4): a(f"v_and_b32 v{A+r}, v{U+i}, v{6+r}")
    buildX(0)
    for i in range(40):
        if i<39: buildX(i+1)
        g.wait(("w",i))
        C="0" if i==0 else "v[24:27]"
        a(f"v_mfma_f32_16x16x32_bf16 v[24:27], {r4(248+4*(i%2))}, {r4(SL(i))}, {C}")
    a("v_lshrrev_b32 v12, 1, v3"); a("v_lshlrev_b32 v12, 9, v12"); a("v_lshl_add_u32 v12, v4, 5, v12"); a("v_and_b32 v13, 1, v3"); a("v_lshl_add_u32 v12, v13, 4, v12")
    a("s_waitcnt vmcnt(0)")
    stamp(4,2)
    a("v_mov_b32 v16, v5")
    rootpoll("B",first_issued=True)
    stamp(5,2)
    for k in range(4): a(f"v_min_u32 v{24+k}, -2, v{24+k}")
    a("buffer_store_dwordx4 v[24:27], v12, s[40:43], s75 offen sc1")
    a("s_mov_b32 s82, 1")
    a("s_cmp_eq_u32 s56, 0"); a("s_cbranch_scc1 L_pref")
    srd(52,20,1728*640*2)
    a("v_mul_u32_u24 v5, 5120, v3"); a("v_lshl_add_u32 v5, v4, 4, v5")
    a("s_mul_i32 s72, s60, 20480"); a("s_add_u32 s73, s72, 2560")
    for t in range(20):
        aa,cb=divmod(t,5)
        so="s72" if aa<2 else "s73"
        a(f"buffer_load_dwordx4 {r4(SL(32+t))}, v5, s[52:55], {so} offen offset:{(aa%2)*1280+cb*256}{wnt}")
        a("s_nop 0")
    a("s_branch L_pref")

    g.lab("L_role")
    prio(3)
    a("s_cmp_eq_u32 s3, 3"); a("s_cbranch_scc1 L_w1_ffn2")
    a("s_cmp_eq_u32 s3, 2"); a("s_cbranch_scc1 L_w0_poll0")
    if SLEEP0: a(f"s_sleep {SLEEP0}")
    stamp(3,2)
    rootpoll("A")
    stamp(5,2)
    g.lab("L_w0_poll0")
    a("v_lshlrev_b32 v18, 3, v1"); a("v_lshlrev_b32 v19, 2, v1")
    a("s_lshl_b32 s61, s57, 12"); a("s_lshl_b32 s62, s58, 9"); a("s_add_u32 s61, s61, s62"); a(f"s_add_u32 s61, s61, {QP_OFF}")
    a("s_mov_b32 s80, 0")
    g.lab("L_w0_poll")
    for k in range(4): a(f"buffer_load_dwordx2 v[{28+2*k}:{29+2*k}], v18, s[40:43], s61 offen offset:{1024*k} sc1")
    a("s_waitcnt vmcnt(0)")
    allvalid(list(range(28,36)),16)
    a("s_cbranch_scc1 L_w0_ok")
    retry("L_w0_poll",SLEEP2)
    g.lab("L_w0_ok")
    stamp(6,2)
    a("v_pk_add_f32 v[28:29], v[28:29], v[30:31]"); a("v_pk_add_f32 v[32:33], v[32:33], v[34:35]"); a("v_pk_add_f32 v[28:29], v[28:29], v[32:33]")
    a("v_cvt_pk_bf16_f32 v28, v28, v29")
    a("v_min_u32 v28, -2, v28")
    a(f"ds_write_b32 v19, v28 offset:{LQ}")
    a("s_branch L_extras")
    g.lab("L_w1_ffn2")
    a("v_and_b32 v14, 3, v1"); a("v_lshlrev_b32 v14, 10, v14"); a("v_bfe_u32 v15, v1, 2, 2"); a("v_lshl_add_u32 v14, v15, 8, v14"); a("v_lshl_add_u32 v14, v3, 4, v14")
    a("s_lshl_b32 s61, s74, 12"); a("s_lshl_b32 s62, s63, 6"); a("s_add_u32 s61, s61, s62"); a(f"s_add_u32 s61, s61, {F1_OFF}")
    a("s_mov_b32 s80, 0")
    g.lab("L_w1_poll")
    a("buffer_load_dwordx4 v[28:31], v14, s[40:43], s61 offen sc1")
    a("s_waitcnt vmcnt(0)")
    allvalid([28,29,30,31],16)
    a("s_cbranch_scc1 L_w1_ok")
    retry("L_w1_poll",SLEEP2)
    g.lab("L_w1_ok")
    stamp(6,2)
    a("v_and_b32 v15, 4, v1"); a("v_cmp_eq_u32 vcc, 0, v15")
    a("s_mov_b32 s61, 0xffff0000")
    for ctrl in ("quad_perm:[1,0,3,2]","quad_perm:[2,3,0,1]"):
        for k in range(4): a(f"v_add_f32_dpp v{28+k}, v{28+k}, v{28+k} {ctrl} {DPPF}")
    for k in range(4): a(f"v_mov_b32_dpp v{32+k}, v{28+k} row_half_mirror {DPPF}")
    for k in range(4):
        a(f"v_cndmask_b32 v{14+k}, v{32+k}, v{28+k}, vcc"); a(f"v_cndmask_b32 v{18+k}, v{28+k}, v{32+k}, vcc")
    a("s_mov_b32 s62, 0x3d372713")
    a("s_mov_b32 s74, 0xc0135761")
    for k in range(4):
        gk=14+k; uk=18+k
        a(f"v_cvt_pk_bf16_f32 v22, v{gk}, v{uk}"); a(f"v_lshlrev_b32 v{gk}, 16, v22"); a(f"v_and_b32 v{uk}, s61, v22")
        a(f"v_mul_f32 v23, v{gk}, v{gk}"); a(f"v_mul_f32 v23, s62, v23"); a(f"v_fma_f32 v23, v23, v{gk}, v{gk}")
        a("v_mul_f32 v23, s74, v23"); a("v_exp_f32 v23, v23"); a("s_nop 0"); a("v_add_f32 v23, 1.0, v23"); a("v_rcp_f32 v23, v23"); a("s_nop 0")
        a(f"v_mul_f32 v23, v{gk}, v23"); a("v_cvt_pk_bf16_f32 v23, v23, v23"); a("v_and_b32 v23, s61, v23")
        a(f"v_mul_f32 v23, v23, v{uk}"); a(f"v_cvt_pk_bf16_f32 v{gk}, v23, v23")
    YF=28
    AS=(10,24)
    for aa in range(4):
        A=AS[aa%2]
        for r in range(4): a(f"v_and_b32 v{A+r}, v{14+aa}, v{6+r}")
        a("s_nop 1")
        for cb in range(5):
            C="0" if aa==0 else r4(YF+4*cb)
            a(f"v_mfma_f32_16x16x32_bf16 {r4(YF+4*cb)}, {r4(A)}, {r4(SL(32+aa*5+cb))}, {C}")
    a("v_lshrrev_b32 v18, 1, v3"); a("v_mul_u32_u24 v18, 2560, v18"); a("v_lshl_add_u32 v18, v4, 5, v18"); a("v_and_b32 v19, 1, v3"); a("v_lshl_add_u32 v18, v19, 4, v18")
    a("s_mul_i32 s61, s60, 5120"); a(f"s_add_u32 s61, s61, {F2_OFF}")
    a("s_nop 4")
    for k in range(20): a(f"v_min_u32 v{YF+k}, -2, v{YF+k}")
    for cb in range(5): a(f"buffer_store_dwordx4 {r4(YF+4*cb)}, v18, s[40:43], s61 offen offset:{512*cb} sc1")
    a("s_nop 1")
    a("s_branch L_extras")

    o.append('.section .rodata,"a"'); o.append(".p2align 6"); o.append(f".amdhsa_kernel {NAME}")
    for x in ["next_free_vgpr 256","next_free_sgpr 102","accum_offset 256","group_segment_fixed_size 0","kernarg_size 96","user_sgpr_count 2","user_sgpr_kernarg_segment_ptr 1","system_sgpr_workgroup_id_x 1","float_denorm_mode_32 3"]:
        o.append("  .amdhsa_"+x)
    o.append(".end_amdhsa_kernel")
    return "\n".join(o)+"\n"

if __name__=="__main__":
    import argparse
    ap=argparse.ArgumentParser(); ap.add_argument("out"); ap.add_argument("kw",nargs="*")
    ar=ap.parse_args()
    kw={}
    for x in ar.kw:
        k,v=x.split("="); kw[k]=int(v) if v.lstrip("-").isdigit() else v
    open(ar.out,"w").write(gen(**kw))
```

```python
import sys
NAME="parallel_sum__gqa_block_cached__geglu_ffn__decode_kernel"
HDR=open("parallel_sum__gqa_block_cached__geglu_ffn__decode.s.ref").read().split("; Override launch")[0]

EP_OFF=0; QP_OFF=1024; F1_OFF=QP_OFF+128*1024; ST_OFF=F1_OFF+108*1024; F2_OFF=ST_OFF+32*1024; Y_OFF=F2_OFF+135*1024; WS_SIZE=Y_OFF+256*2560
NFREE=20
STAMP_OFF=0x8000000
LQ=0; LN_=256; LF=320; LO=512; LO_STR=544; LY=LO+8*LO_STR; LY_STR=2560; LX=LY+8*LY_STR; LU=LX+4096; LH=LU+4096; LDS_BYTES=LH+256
LOG2E=0x3fb8aa3b
SCALE=0x3db504f3
DPPF="row_mask:0xf bank_mask:0xf"
T=[16,17,18,19]
SN=15

class G:
    def __init__(s): s.o=[]; s.vm=[]
    def a(s,x): s.o.append("    "+x)
    def lab(s,x): s.o.append(x+":")
    def vmem(s,tag,x): s.a(x); s.vm.append(tag)
    def vreset(s): s.vm=[]
    def wait(s,tag):
        i=len(s.vm)-1-s.vm[::-1].index(tag)
        n=len(s.vm)-1-i
        assert n<=63
        s.a(f"s_waitcnt vmcnt({n})")

def mix(A,B):
    out=[]; ia=ib=0
    while ia<len(A) or ib<len(B):
        if ib>=len(B) or (ia<len(A) and ia*len(B)<=ib*len(A)): out.append(A[ia]); ia+=1
        else: out.append(B[ib]); ib+=1
    return out

def gen(KNT=1, WNT=1, ONT=0, stamps=0, NPRE0=4, NEX=4, SLEEP1=16, SLEEP2=8, SLEEPF=4, PAD=0, OLAST=0, RPOS=20, DBG=0, FW=7, PADAT=0):
    g=G(); a=g.a
    knt=" nt" if KNT else ""; wnt=" nt" if WNT else ""; ont=" nt" if ONT else ""
    def stamp(k,mode=1):
        if PAD and PADAT==k+10*(mode-1) and PADAT: a("s_memrealtime s[100:101]"); a("s_waitcnt lgkmcnt(0)")
        if stamps==mode or (stamps and k in (0,1,2,7) and mode==1): a(f"s_memrealtime s[{84+2*k}:{85+2*k}]")
    def prio(p): a(f"s_setprio {p}")
    def xrow(op,v,t,steps=(16,32)):
        for st in steps:
            a(f"v_mov_b32 v{t}, v{v}"); a("s_nop 1"); a(f"v_permlane{st}_swap_b32 v{v}, v{t}"); a(f"{op} v{v}, v{v}, v{t}")
    def dpp(op,v,ctrl,nop=True):
        if nop: a("s_nop 1")
        a(f"{op}_dpp v{v}, v{v}, v{v} {ctrl} {DPPF}")
    def srd(d,p,size):
        a(f"s_mov_b32 s{d}, s{p}"); a(f"s_mov_b32 s{d+1}, s{p+1}"); a(f"s_mov_b32 s{d+2}, {size:#x}"); a(f"s_mov_b32 s{d+3}, 0x20000")
    def ldsvalid(regs,t):
        if len(regs)==2: a(f"v_max_u32 v{t}, v{regs[0]}, v{regs[1]}"); k=2
        else: a(f"v_max3_u32 v{t}, v{regs[0]}, v{regs[1]}, v{regs[2]}"); k=3
        while k+1<len(regs):
            a(f"v_max3_u32 v{t}, v{t}, v{regs[k]}, v{regs[k+1]}"); k+=2
        if k<len(regs): a(f"v_max_u32 v{t}, v{t}, v{regs[k]}")
        a(f"v_cmp_eq_u32 vcc, -1, v{t}")
        a("s_cmp_eq_u64 vcc, 0")
    def untag(bases,t):
        regs=[]
        for b in bases:
            for k in range(4): a(f"v_xor_b32 v{b+k}, s{T[k]}, v{b+k}"); regs.append(b+k)
        a(f"v_or3_b32 v{t}, v{regs[0]}, v{regs[1]}, v{regs[2]}"); k=3
        while k+1<len(regs):
            a(f"v_or3_b32 v{t}, v{t}, v{regs[k]}, v{regs[k+1]}"); k+=2
        if k<len(regs): a(f"v_or_b32 v{t}, v{t}, v{regs[k]}")
        a(f"v_and_b32 v{t}, 15, v{t}")
        a(f"v_cmp_ne_u32 vcc, 0, v{t}")
        a("s_cmp_eq_u64 vcc, 0")
    def tag(b):
        for k in range(4): a(f"v_and_or_b32 v{b+k}, v{b+k}, -16, s{T[k]}")
    def settags(v):
        a(f"v_readfirstlane_b32 s{SN}, v{v}")
        a("s_nop 0")
        for k in range(4): a(f"s_bfe_u32 s{T[k]}, s{SN}, {(4<<16)|(4*k):#x}")
    def retry(lab,sl,lim=0x10000,lds=False):
        if DBG&1 and not lds: return
        a(f"s_sleep {sl}"); a("s_add_u32 s80, s80, 1"); a(f"s_cmp_lt_u32 s80, {lim:#x}"); a(f"s_cbranch_scc1 {lab}")
    def rootpoll(tagn,v):
        a("s_mov_b32 s80, 0"); a("v_mov_b32 v21, 0")
        a(f"s_branch L_rp_chk{tagn}")
        g.lab(f"L_rp{tagn}")
        a(f"buffer_load_dword v{v}, v21, s[44:47], 0 offen sc1")
        a("s_waitcnt vmcnt(0)")
        g.lab(f"L_rp_chk{tagn}")
        a(f"v_cmp_eq_u32 vcc, 0, v{v}"); a("s_cmp_eq_u64 vcc, 0"); a(f"s_cbranch_scc1 L_rp_ok{tagn}")
        retry(f"L_rp{tagn}",SLEEP1)
        g.lab(f"L_rp_ok{tagn}")
        settags(v)
    def masks(t0,t1):
        a(f"v_and_b32 v{t0}, 1, v1"); a(f"v_lshlrev_b32 v{t0}, 4, v{t0}"); a(f"v_mov_b32 v{t1}, 0xffff"); a(f"v_lshlrev_b32 v{t0}, v{t0}, v{t1}")
        a(f"v_bfe_u32 v{t1}, v1, 1, 2")
        for r in range(4):
            a(f"v_cmp_eq_u32 vcc, {r}, v{t1}"); a("s_nop 1"); a(f"v_cndmask_b32 v{6+r}, 0, v{t0}, vcc")
    def pkadd(d,s):
        for k in range(2): a(f"v_pk_add_f32 v[{d+2*k}:{d+2*k+1}], v[{d+2*k}:{d+2*k+1}], v[{s+2*k}:{s+2*k+1}]")
    def scatter_reduce(b,dst,t0,t1):
        a("s_nop 1")
        a(f"v_add_f32_dpp v{t0}, v{b}, v{b} row_ror:8 row_mask:0xf bank_mask:0x3")
        a(f"v_add_f32_dpp v{t0}, v{b+1}, v{b+1} row_ror:8 row_mask:0xf bank_mask:0xc")
        a(f"v_add_f32_dpp v{t1}, v{b+2}, v{b+2} row_ror:8 row_mask:0xf bank_mask:0x3")
        a(f"v_add_f32_dpp v{t1}, v{b+3}, v{b+3} row_ror:8 row_mask:0xf bank_mask:0xc")
        a(f"v_add_f32_dpp v{dst}, v{t0}, v{t0} row_shl:4 row_mask:0xf bank_mask:0x5")
        a("s_nop 0")
        a(f"v_add_f32_dpp v{dst}, v{t1}, v{t1} row_shr:4 row_mask:0xf bank_mask:0xa")
        xrow("v_add_f32",dst,t0)
    SL=lambda i: 48+4*i
    def r4(b): return f"v[{b}:{b+3}]"
    o=g.o
    o.append(HDR.rstrip("\n"))
    o.append(f"; @launch grid=(256,1,1) block=(512,1,1) lds={LDS_BYTES}")
    o.append('.amdgcn_target "amdgcn-amd-amdhsa--gfx950"'); o.append(".text"); o.append(f".globl {NAME}"); o.append(".p2align 8"); o.append(f".type {NAME},@function"); o.append(f"{NAME}:")
    a("s_cmp_ge_u32 s2, 256"); a("s_cbranch_scc1 L_end")
    a("s_load_dwordx16 s[4:19], s[0:1], 0"); a("s_load_dwordx8 s[20:27], s[0:1], 64")
    stamp(0)
    if PAD: a("s_memrealtime s[100:101]")
    a("v_lshrrev_b32 v3, 6, v0"); a("v_and_b32 v1, 63, v0"); a("v_readfirstlane_b32 s56, v3"); a("v_lshlrev_b32 v2, 4, v1")
    a("s_and_b32 s57, s2, 7"); a("s_lshl_b32 s57, s57, 2"); a("s_lshr_b32 s61, s2, 3"); a("s_and_b32 s62, s61, 3"); a("s_add_u32 s57, s57, s62")
    a("s_lshr_b32 s58, s2, 7")
    a("s_lshr_b32 s59, s2, 5"); a("s_and_b32 s59, s59, 3")
    a("s_lshl_b32 s60, s61, 2"); a("s_lshr_b32 s63, s2, 1"); a("s_and_b32 s63, s63, 3"); a("s_or_b32 s60, s60, s63")
    a("s_lshl_b32 s81, s58, 5"); a("s_add_u32 s81, s81, s57")
    a("s_lshl_b32 s64, s81, 20"); a("s_lshl_b32 s62, s59, 18"); a("s_add_u32 s64, s64, s62")
    a("s_lshr_b32 s62, s56, 2"); a("s_lshl_b32 s62, s62, 17"); a("s_add_u32 s64, s64, s62")
    a("s_and_b32 s69, s56, 3"); a("s_lshl_b32 s62, s69, 10"); a("s_add_u32 s64, s64, s62"); a("s_mov_b32 s65, s64")
    a("s_mov_b32 s82, 0")
    a("v_lshrrev_b32 v3, 4, v1"); a("v_and_b32 v4, 15, v1")
    a("s_bitcmp1_b32 s2, 0")
    a(f"s_cselect_b32 s61, 0, {NFREE}"); a("s_mov_b32 s79, 0"); a("s_mov_b32 s78, 3456"); a("s_cselect_b32 s78, 8192, s78"); a("s_cselect_b32 s76, 8, 7"); a("s_cselect_b32 s77, 15, 7")
    a(f"s_mov_b32 s75, {F1_OFF}"); a(f"s_cselect_b32 s75, {QP_OFF}, s75"); a("s_cselect_b32 s83, 0, 64")
    a("s_sub_u32 s66, s60, s61")
    a("s_cselect_b32 s67, 0, %d"%(0 if DBG&2 else 1))
    a("s_lshr_b32 s74, s66, 2")
    a("s_lshl_b32 s62, s66, 10"); a("s_add_u32 s75, s75, s62")
    a("s_cmp_lt_u32 s63, 2"); a("s_cselect_b32 s70, 8, 12"); a("s_cselect_b32 s68, 0, -128")
    a("s_lshl_b32 s62, s63, 2"); a("s_add_u32 s62, s62, s69"); a("s_mul_i32 s62, s62, s70"); a("s_lshl_b32 s62, s62, 2"); a("s_add_u32 s68, s68, s62")
    a("v_mov_b32 v37, s68"); a("v_mad_u32_u24 v22, v3, s70, v37"); a("v_mul_lo_u32 v36, v22, s78")
    a("s_lshl_b32 s62, s74, s76"); a("v_and_b32 v37, s77, v1"); a("v_lshl_add_u32 v36, v37, 4, v36"); a("v_add_u32 v36, s62, v36"); a("v_mov_b32 v37, 0")
    a("v_and_b32 v38, 8, v1"); a("v_cmp_eq_u32 vcc, 0, v38")
    a("s_lshl_b32 s62, s74, 1"); a("s_and_b32 s61, s66, 1"); a("s_add_u32 s62, s62, s61"); a("s_add_u32 s83, s83, s62")
    a("s_cmp_lt_u32 s83, 80"); a("s_cselect_b32 s61, %d, 0"%(0 if DBG&4 else 5))
    a("s_cmp_lt_u32 s63, 2"); a("s_cselect_b32 s61, %d, s61"%(0 if DBG&34 else 3))
    a("s_cmp_lt_u32 s60, 17"); a("s_cselect_b32 s62, %d, 0"%(0 if DBG&34 else 3))
    a("s_add_u32 s71, s60, 118")
    a("s_cmp_ge_i32 s66, 0"); a("s_cselect_b32 s61, s61, s62"); a("s_cselect_b32 s83, s83, s71")
    a("s_cmp_eq_u32 s61, 3"); a(f"s_cselect_b32 s62, {FW}, 3")
    a("s_cmp_eq_u32 s56, s62"); a("s_cselect_b32 s3, s61, 0")
    a("s_cmp_eq_u32 s56, 0"); a("s_cselect_b32 s3, 1, s3")
    a("s_cmp_eq_u32 s56, 2"); a("s_cselect_b32 s3, 2, s3")
    a("s_cmp_ge_u32 s56, 4"); a("s_cselect_b32 s67, s67, 0")
    for k in range(4): a(f"v_mov_b32 v{48+k}, -1")
    a("s_waitcnt lgkmcnt(0)")
    srd(28,6,64<<20); srd(40,26,WS_SIZE); srd(44,24,256)
    a("s_cmp_eq_u32 s67, 1"); a("s_cbranch_scc0 L_lo")
    prio(3)
    a("v_lshrrev_b32 v38, 5, v1"); a("v_mul_u32_u24 v38, 1280, v38"); a("v_and_b32 v39, 31, v1"); a("v_lshl_add_u32 v12, v39, 3, v38")
    a("s_cmp_lg_u32 s56, 5"); a("s_cbranch_scc1 L_nox")
    srd(48,4,2560)
    for k in range(5): a(f"buffer_load_dwordx2 v[{24+2*k}:{25+2*k}], v12, s[48:51], 0 offen offset:{256*k}")
    g.lab("L_nox")
    a("s_bitcmp1_b32 s2, 0"); a("s_cselect_b32 s61, s10, s16"); a("s_cselect_b32 s62, s11, s17"); a("s_cselect_b32 s72, s10, s18"); a("s_cselect_b32 s73, s11, s19")
    a("v_mov_b32 v38, s72"); a("v_mov_b32 v39, s61"); a("v_cndmask_b32 v10, v38, v39, vcc")
    a("v_mov_b32 v38, s73"); a("v_mov_b32 v39, s62"); a("v_cndmask_b32 v11, v38, v39, vcc")
    a("v_lshl_add_u64 v[10:11], v[36:37], 0, v[10:11]")
    for i in range(12):
        if i==8: a("s_cmp_eq_u32 s70, 8"); a("s_cbranch_scc1 L_w8")
        a(f"global_load_dwordx4 {r4(SL(32+i))}, v[10:11], off{wnt}")
        if i<11: a("v_lshl_add_u64 v[10:11], v[10:11], 0, s[78:79]")
    g.lab("L_w8")
    a("s_lshl_b32 s61, s69, 10"); a("v_add_u32 v13, s61, v2"); a(f"ds_write_b128 v13, v[48:51] offset:{LU}")
    a(f"ds_write_b128 v13, v[48:51] offset:{LX}")
    a("s_waitcnt lgkmcnt(0)")
    a("s_barrier")
    a("s_mov_b32 s82, 1")
    a("s_branch L_unit2")
    g.lab("L_lo")
    a("s_cmp_lg_u32 s2, 0"); a("s_cbranch_scc1 L_pref")
    a("s_cmp_lg_u32 s56, 1"); a("s_cbranch_scc1 L_pref")
    a("v_mov_b32 v36, 0"); a("s_mov_b64 exec, 1")
    a(f"buffer_load_dword v37, v36, s[40:43], 0 offen offset:{EP_OFF} sc1")
    a("s_waitcnt vmcnt(0)")
    a("v_add_u32 v37, 1, v37"); a("v_max_u32 v37, 1, v37")
    a(f"buffer_store_dword v37, v36, s[40:43], 0 offen offset:{EP_OFF} sc1")
    a("buffer_store_dword v37, v36, s[44:47], 0 offen sc1")
    a("s_mov_b64 exec, -1")
    stamp(4,2)
    g.lab("L_pref")
    prio(2)
    g.vreset()
    def kvload(kind,i,slot):
        srdn="s[28:31]" if kind=="K" else "s[32:35]"
        p=64 if kind=="K" else 65
        g.vmem((kind,i), f"buffer_load_dwordx4 {r4(SL(slot))}, v2, {srdn}, s{p} offen{knt}")
        a(f"s_add_u32 s{p}, s{p}, 4096")
    Vs=[("V",i) for i in range(32)]; Os=[("O",i) for i in range(20)]
    R=mix(Vs,Os[:20-OLAST])+Os[20-OLAST:]
    slot_of={}
    for i in range(32): slot_of[("K",i)]=i
    for k,t in enumerate(R): slot_of[t]=(32+k) if k<20 else k-20
    def sload(t):
        k=slot_of[t]
        if t[0] in "KV": kvload(t[0],t[1],k)
        else:
            aa,cb=divmod(t[1],5)
            so="s72" if aa<2 else "s73"
            g.vmem(t, f"buffer_load_dwordx4 {r4(SL(k))}, v5, s[36:39], {so} offen offset:{(aa%2)*1280+cb*256}{ont}")
            a("s_nop 0")
    for i in range(32):
        if i==NPRE0:
            a("s_bitcmp1_b32 s82, 0"); a("s_cbranch_scc1 L_nobar0")
            a("v_mov_b32 v37, -1"); a("v_lshlrev_b32 v36, 2, v1"); a(f"ds_write_b32 v36, v37 offset:{LQ}")
            a("s_waitcnt lgkmcnt(0)")
            a("s_barrier")
            masks(36,37)
            g.lab("L_nobar0")
        if i==RPOS:
            a("s_cmp_lg_u32 s3, 1"); a("s_cbranch_scc1 L_norp")
            a("v_mov_b32 v21, 0")
            a("buffer_load_dword v20, v21, s[44:47], 0 offen sc1")
            g.lab("L_norp")
        sload(("K",i))
    a("s_cmp_eq_u32 s3, 1"); a("s_cbranch_scc1 L_poller")
    g.lab("L_extras")
    prio(1)
    a("v_mov_b32 v45, 0"); a("v_mov_b32 v23, 0"); a("v_mov_b32 v44, 0"); a("v_mov_b32 v22, 0")
    srd(32,8,64<<20); srd(36,12,4096*640*2)
    a("v_mul_u32_u24 v5, 5120, v3"); a("v_lshl_add_u32 v5, v4, 4, v5")
    a("s_lshl_b32 s72, s57, 7"); a("s_lshl_b32 s62, s56, 4"); a("s_add_u32 s72, s72, s62"); a("s_mul_i32 s72, s72, 1280"); a("s_add_u32 s73, s72, 2560")
    a("s_cmp_eq_u32 s3, 3"); a("s_cbranch_scc1 L_wdown")
    g.lab("L_exl")
    for t in R[:NEX]: sload(t)
    a("s_cmp_eq_u32 s3, 4"); a("s_cbranch_scc1 L_rest")
    g.lab("L_qw")
    stamp(1)
    a(f"v_lshlrev_b32 v36, 4, v4")
    a("s_mov_b32 s80, 0")
    g.lab("L_qwait")
    a(f"ds_read_b128 v[10:13], v36 offset:{LQ}")
    a(f"ds_read_b32 v40, v45 offset:{LN_}")
    a("s_waitcnt lgkmcnt(0)")
    ldsvalid([10,11,12,13],37)
    a("s_cbranch_scc1 L_qok")
    retry("L_qwait",2,0x100000,lds=True)
    g.lab("L_qok")
    stamp(2)
    prio(3)
    settags(40)
    a("s_mov_b32 s74, 0x%x"%SCALE); a("s_mov_b32 s75, 0xffff0000")
    P=28; TT=36
    for d in range(4):
        g.wait(("K",8*d+7))
        for j in range(4):
            for t in range(8):
                src2="0" if j==0 else f"v{P+t}"
                a(f"v_dot2_f32_bf16 v{P+t}, v{SL(8*d+t)+j}, v{10+j}, {src2}")
        for h in range(2):
            b=P+4*h
            a(f"v_add_f32_dpp v{TT+2*h}, v{b}, v{b} row_ror:8 row_mask:0xf bank_mask:0x3")
            a(f"v_add_f32_dpp v{TT+2*h}, v{b+1}, v{b+1} row_ror:8 row_mask:0xf bank_mask:0xc")
            a(f"v_add_f32_dpp v{TT+2*h+1}, v{b+2}, v{b+2} row_ror:8 row_mask:0xf bank_mask:0x3")
            a(f"v_add_f32_dpp v{TT+2*h+1}, v{b+3}, v{b+3} row_ror:8 row_mask:0xf bank_mask:0xc")
        for h in range(2):
            a(f"v_add_f32_dpp v{TT+4+h}, v{TT+2*h}, v{TT+2*h} row_shl:4 row_mask:0xf bank_mask:0x5")
            a(f"v_add_f32_dpp v{TT+4+h}, v{TT+2*h+1}, v{TT+2*h+1} row_shr:4 row_mask:0xf bank_mask:0xa")
        a("s_nop 0")
        for qp in ("[1,0,3,2]","[2,3,0,1]"):
            for h in range(2): a(f"v_add_f32_dpp v{TT+4+h}, v{TT+4+h}, v{TT+4+h} quad_perm:{qp} {DPPF}")
            a("s_nop 0")
        a(f"v_cvt_pk_bf16_f32 v{TT}, v{TT+4}, v{TT+5}")
        a(f"v_lshlrev_b32 v{TT+1}, 16, v{TT}"); a(f"v_and_b32 v{TT+2}, s75, v{TT}")
        a(f"v_mul_f32 v{TT+1}, s74, v{TT+1}"); a(f"v_mul_f32 v{TT+2}, s74, v{TT+2}")
        a(f"v_cvt_pk_bf16_f32 v{TT}, v{TT+1}, v{TT+2}")
        a(f"v_lshlrev_b32 v{14+2*d}, 16, v{TT}"); a(f"v_and_b32 v{15+2*d}, s75, v{TT}")
    a("v_max3_f32 v40, v14, v15, v16"); a("v_max3_f32 v41, v17, v18, v19"); a("v_max3_f32 v40, v40, v20, v21"); a("v_max_f32 v40, v40, v41")
    dpp("v_max_f32",40,"row_ror:4"); dpp("v_max_f32",40,"row_ror:8"); xrow("v_max_f32",40,41)
    a("s_mov_b32 s74, 0x%x"%LOG2E)
    a("v_mul_f32 v36, s74, v40")
    for k in range(8): a(f"v_fma_f32 v{14+k}, v{14+k}, s74, -v36")
    for k in range(8): a(f"v_exp_f32 v{14+k}, v{14+k}")
    a(f"v_mov_b32 v38, s{SN}")
    a("v_add_f32 v37, v14, v15"); a("v_add_f32 v40, v16, v17"); a("v_add_f32 v37, v37, v18"); a("v_add_f32 v40, v40, v19"); a("v_add_f32 v37, v37, v20"); a("v_add_f32 v40, v40, v21"); a("v_add_f32 v37, v37, v40")
    for k in range(8): a(f"v_cvt_pk_bf16_f32 v{14+k}, v{14+k}, v{14+k}")
    dpp("v_add_f32",37,"row_ror:4",nop=False); dpp("v_add_f32",37,"row_ror:8"); xrow("v_add_f32",37,41)
    a(f"v_mov_b32 v39, s{SN}")
    a("s_lshl_b32 s61, s81, 5"); a("s_lshl_b32 s62, s59, 3"); a("s_add_u32 s61, s61, s62"); a("s_add_u32 s61, s61, s56"); a("s_lshl_b32 s61, s61, 4"); a(f"s_add_u32 s61, s61, {ST_OFF}")
    a("s_mov_b64 exec, 1")
    a("buffer_store_dwordx4 v[36:39], v45, s[40:43], s61 offen sc1")
    a("s_mov_b64 exec, -1")
    stamp(3)
    a("s_cmp_eq_u32 s3, 3"); a("s_cbranch_scc1 L_ffn2")
    g.lab("L_rest")
    prio(0)
    for t in R[NEX:]: sload(t)
    a("v_lshlrev_b32 v36, 5, v4"); a("v_lshl_add_u32 v36, v3, 4, v36")
    a(f"s_mul_i32 s61, s56, {LO_STR}"); a("v_add_u32 v41, s61, v36")
    a("v_and_b32 v37, 0x1f0, v2")
    a(f"s_mul_i32 s61, s56, {LY_STR}"); a("v_add_u32 v42, s61, v37")
    a("v_and_b32 v36, 7, v1"); a(f"v_mul_u32_u24 v40, {LO_STR}, v36"); a("v_lshl_add_u32 v40, v3, 4, v40"); a("s_lshl_b32 s61, s56, 6"); a("v_add_u32 v40, s61, v40")
    a("s_lshl_b32 s61, s59, 5"); a("v_lshl_add_u32 v43, v36, 2, s61")
    a("s_lshl_b32 s76, s58, 7"); a("s_lshl_b32 s62, s57, 2"); a("s_add_u32 s76, s76, s62"); a("s_add_u32 s76, s76, s59"); a("s_mul_i32 s76, s76, 2560"); a(f"s_add_u32 s76, s76, {Y_OFF}")
    a("s_cmp_eq_u32 s3, 5"); a("s_cbranch_scc1 L_c1")
    a("s_cmp_eq_u32 s3, 2"); a("s_cbranch_scc1 L_s1")
    g.lab("L_vphase")
    beta=[0,2,1,3]
    def buildA(i):
        A=28+4*(i%2)
        for r in range(4):
            a(f"v_and_b32_dpp v{A+r}, v{14+i//4}, v{6+r} row_newbcast:{4*beta[i%4]} {DPPF}")
    buildA(0)
    for i in range(32):
        if i<31: buildA(i+1)
        g.wait(("V",i))
        A=28+4*(i%2)
        C="0" if i==0 else "v[24:27]"
        a(f"v_mfma_f32_16x16x32_bf16 v[24:27], {r4(A)}, {r4(SL(slot_of[('V',i)]))}, {C}")
    a("s_mov_b64 exec, 0xffffffff")
    a("s_nop 6")
    a(f"ds_write_b128 v41, v[24:27] offset:{LO}")
    a("s_mov_b64 exec, -1")
    stamp(4)
    a("s_cmp_eq_u32 s3, 2"); a("s_cbranch_scc1 L_w2stats")
    a("s_cmp_eq_u32 s3, 5"); a("s_cbranch_scc1 L_w3pre")
    g.lab("L_bar2")
    a("v_lshlrev_b32 v34, 4, v0")
    a("s_waitcnt lgkmcnt(0)")
    a("s_barrier")
    stamp(5)
    a(f"ds_read_b128 v[36:39], v40 offset:{LO}")
    a(f"ds_read_b32 v44, v43 offset:{LF}")
    a("s_waitcnt vmcnt(0) lgkmcnt(0)")
    for k in range(4): a(f"v_mul_f32 v{36+k}, v44, v{36+k}")
    for ctrl in ("quad_perm:[1,0,3,2]","quad_perm:[2,3,0,1]","row_half_mirror"):
        for k in range(4): a(f"v_add_f32_dpp v{36+k}, v{36+k}, v{36+k} {ctrl} {DPPF}")
    for k in range(4): a(f"v_cvt_pk_bf16_f32 v{36+k}, v{36+k}, v{36+k}")
    vslots=sorted(slot_of[("V",i)] for i in range(32))
    YAs=vslots[0:5]; ABs=vslots[5:9]
    def AND(k,r): a(f"v_and_b32 v{SL(ABs[k])+r}, v{36+k}, v{6+r}")
    def M(cb,aa):
        C="0" if aa==0 else r4(SL(YAs[cb]))
        a(f"v_mfma_f32_16x16x32_bf16 {r4(SL(YAs[cb]))}, {r4(SL(ABs[aa]))}, {r4(SL(slot_of[('O',aa*5+cb)]))}, {C}")
    def W(cb): a(f"ds_write_b128 v42, {r4(SL(YAs[cb]))} offset:{LY+512*cb}")
    for r in range(4): AND(0,r)
    rest=[(k,r) for k in range(1,4) for r in range(4)]
    AND(*rest.pop(0)); AND(*rest.pop(0))
    for cb in range(5):
        M(cb,0)
        for _ in range(3 if cb<2 else 2):
            if rest: AND(*rest.pop(0))
    a("s_nop 0")
    for cb in range(5):
        for aa in range(1,4): M(cb,aa)
        if cb>=2: W(cb-2); a("s_nop 0")
        else: a("s_nop 1")
    a("s_nop 0"); W(3); a("s_nop 3"); W(4)
    a("s_waitcnt lgkmcnt(0)")
    a("s_barrier")
    stamp(6)
    a("s_cmp_ge_u32 s56, 3"); a("s_cbranch_scc1 L_fin")
    a("v_cmp_gt_u32 vcc, 160, v0"); a("s_and_saveexec_b64 s[78:79], vcc")
    for w in range(8): a(f"ds_read_b128 {r4(SL(w))}, v34 offset:{LY+LY_STR*w}")
    a("s_waitcnt lgkmcnt(0)" if stamps else "s_waitcnt lgkmcnt(4)")
    pkadd(SL(0),SL(1)); pkadd(SL(2),SL(3)); pkadd(SL(0),SL(2))
    a("s_waitcnt lgkmcnt(0)")
    pkadd(SL(4),SL(5)); pkadd(SL(6),SL(7)); pkadd(SL(4),SL(6)); pkadd(SL(0),SL(4))
    tag(SL(0))
    a(f"buffer_store_dwordx4 {r4(SL(0))}, v34, s[40:43], s76 offen sc1")
    a("s_mov_b64 exec, -1")
    a("s_branch L_done")
    g.lab("L_fin")
    a("s_cmp_lg_u32 s3, 5"); a("s_cbranch_scc1 L_done")
    a("s_mov_b32 s80, 0")
    srd(52,22,2560)
    g.lab("L_fin_poll")
    a("s_mov_b32 s62, s63")
    for i in range(8):
        a(f"buffer_load_dwordx4 {r4(SL(i))}, v45, s[40:43], s62 offen sc1")
        if i<7: a("s_add_u32 s62, s62, 40960")
    a("s_waitcnt vmcnt(0)")
    untag([SL(i) for i in range(8)],36)
    a("s_cbranch_scc1 L_fin_ok")
    retry("L_fin_poll",SLEEPF)
    g.lab("L_fin_ok")
    pkadd(SL(0),SL(1)); pkadd(SL(2),SL(3)); pkadd(SL(4),SL(5)); pkadd(SL(6),SL(7)); pkadd(SL(0),SL(2)); pkadd(SL(4),SL(6)); pkadd(SL(0),SL(4))
    scatter_reduce(SL(0),38,36,37)
    a("v_cvt_pk_bf16_f32 v38, v38, v38"); a("v_lshlrev_b32 v38, 16, v38"); a("v_add_f32 v38, v46, v38")
    a("v_cvt_pk_bf16_f32 v38, v38, v38"); a("v_lshlrev_b32 v38, 16, v38"); a("v_add_f32 v38, v47, v38")
    a("v_cvt_pk_bf16_f32 v38, v38, v38")
    a("s_mov_b64 exec, 0xffff")
    a("buffer_store_short v38, v23, s[52:55], 0 offen")
    a("s_mov_b64 exec, -1")
    g.lab("L_done")
    if PAD:
        g.lab("L_pad")
        a("s_memrealtime s[98:99]"); a("s_waitcnt lgkmcnt(0)"); a("s_sub_u32 s98, s98, s100"); a(f"s_cmp_lt_u32 s98, {PAD*100}"); a("s_cbranch_scc1 L_pad")
    if stamps:
        stamp(7)
        a("s_waitcnt lgkmcnt(0)")
        a(f"s_add_u32 s52, s26, {STAMP_OFF}"); a("s_addc_u32 s53, s27, 0"); a("s_mov_b32 s54, 0x100000"); a("s_mov_b32 s55, 0x20000")
        for k in range(8): a(f"v_mov_b32 v{48+k}, s{84+2*k}")
        a("s_lshl_b32 s61, s2, 3"); a("s_add_u32 s61, s61, s56"); a("s_lshl_b32 s61, s61, 5")
        a("v_mov_b32 v36, 0"); a("s_mov_b64 exec, 1")
        a("buffer_store_dwordx4 v[48:51], v36, s[52:55], s61 offen"); a("buffer_store_dwordx4 v[52:55], v36, s[52:55], s61 offen offset:16")
    g.lab("L_end")
    a("s_endpgm")

    g.lab("L_s1")
    a("v_and_b32 v44, 0x1f0, v2"); a("v_lshrrev_b32 v45, 2, v44")
    a("s_lshl_b32 s77, s81, 9"); a(f"s_add_u32 s77, s77, {ST_OFF}")
    a("buffer_load_dwordx4 v[10:13], v44, s[40:43], s77 offen sc1")
    a("s_branch L_vphase")
    g.lab("L_w2stats")
    prio(3)
    a("s_mov_b32 s80, 0")
    a("s_branch L_w2_chk")
    g.lab("L_w2_poll")
    a("buffer_load_dwordx4 v[10:13], v44, s[40:43], s77 offen sc1")
    g.lab("L_w2_chk")
    a("s_waitcnt vmcnt(0)")
    a(f"v_cmp_ne_u32 vcc, s{SN}, v12"); a(f"v_cmp_ne_u32 s[78:79], s{SN}, v13"); a("s_or_b64 vcc, vcc, s[78:79]")
    a("s_cbranch_scc0 L_w2_ok")
    retry("L_w2_poll",8)
    g.lab("L_w2_ok")
    a("v_mov_b32 v38, v10")
    for ctrl in ("quad_perm:[1,0,3,2]","quad_perm:[2,3,0,1]","row_half_mirror","row_mirror"): dpp("v_max_f32",38,ctrl)
    xrow("v_max_f32",38,39,steps=(16,))
    a("v_sub_f32 v36, v10, v38"); a("v_exp_f32 v36, v36"); a("s_nop 0"); a("v_mul_f32 v37, v36, v11")
    for ctrl in ("quad_perm:[1,0,3,2]","quad_perm:[2,3,0,1]","row_half_mirror","row_mirror"): dpp("v_add_f32",37,ctrl)
    xrow("v_add_f32",37,39,steps=(16,))
    a("v_rcp_f32 v37, v37"); a("s_nop 0"); a("v_mul_f32 v36, v36, v37")
    a(f"ds_write_b32 v45, v36 offset:{LF}")
    a("s_branch L_bar2")

    g.lab("L_c1")
    a("s_cmp_ge_u32 s83, 40"); a("s_cselect_b32 s61, 1, 0"); a("s_mul_i32 s62, s61, 40"); a("s_sub_u32 s62, s83, s62")
    a("s_mul_i32 s63, s61, 327680"); a("s_lshl_b32 s74, s62, 6"); a("s_add_u32 s63, s63, s74"); a(f"s_add_u32 s63, s63, {Y_OFF}")
    a("v_lshrrev_b32 v36, 2, v1"); a("v_and_b32 v37, 3, v1")
    a("v_mul_u32_u24 v45, 2560, v36"); a("v_lshl_add_u32 v45, v37, 4, v45")
    a("v_mul_u32_u24 v44, 5120, v36"); a("v_lshl_add_u32 v44, v37, 4, v44")
    a("s_lshr_b32 s75, s62, 3"); a("s_lshl_b32 s75, s75, 10"); a("s_lshl_b32 s74, s61, 9"); a("s_add_u32 s75, s75, s74"); a("s_and_b32 s74, s62, 7"); a("s_lshl_b32 s74, s74, 6"); a("s_add_u32 s75, s75, s74"); a(f"s_add_u32 s75, s75, {F2_OFF}")
    a("s_add_u32 s77, s75, 81920")
    a("v_and_b32 v38, 1, v36"); a("v_lshlrev_b32 v38, 1, v38"); a("v_bfe_u32 v39, v36, 1, 1"); a("v_or_b32 v38, v38, v39")
    a("v_lshl_add_u32 v38, v37, 3, v38"); a("v_lshlrev_b32 v38, 1, v38")
    a("s_mul_i32 s61, s61, 1280"); a("s_lshr_b32 s74, s62, 3"); a("s_lshl_b32 s74, s74, 8"); a("s_add_u32 s61, s61, s74")
    a("s_and_b32 s74, s62, 3"); a("s_lshl_b32 s74, s74, 6"); a("s_add_u32 s61, s61, s74")
    a("s_and_b32 s74, s62, 4"); a("s_lshl_b32 s74, s74, 1"); a("s_add_u32 s61, s61, s74"); a("v_add_u32 v23, s61, v38")
    srd(48,4,2560)
    a("buffer_load_ushort v46, v23, s[48:51], 0 offen")
    def f2loads():
        for k in range(4): a(f"v_mov_b32 v{36+k}, s{T[k]}")
        a("buffer_load_dwordx4 v[10:13], v44, s[40:43], s75 offen sc1")
        a("s_mov_b32 exec_hi, 0xfff")
        a("buffer_load_dwordx4 v[36:39], v44, s[40:43], s77 offen sc1")
        a("s_mov_b32 exec_hi, -1")
    f2loads()
    a("s_branch L_vphase")
    g.lab("L_w3pre")
    prio(3)
    a("s_mov_b32 s80, 0")
    a("s_branch L_w3_chk")
    g.lab("L_w3_poll")
    f2loads()
    g.lab("L_w3_chk")
    a("s_waitcnt vmcnt(0)")
    untag([10,36],28)
    a("s_cbranch_scc1 L_w3_ok")
    retry("L_w3_poll",16)
    g.lab("L_w3_ok")
    pkadd(10,36)
    scatter_reduce(10,47,28,29)
    a("v_cvt_pk_bf16_f32 v47, v47, v47"); a("v_lshlrev_b32 v47, 16, v47"); a("v_lshlrev_b32 v46, 16, v46")
    a("s_branch L_bar2")

    g.lab("L_unit2")
    masks(36,37)
    a("s_cmp_lg_u32 s56, 5"); a("s_cbranch_scc1 L_unit3")
    a("s_mov_b32 s61, 0xffff0000")
    a(f"s_waitcnt vmcnt(8)")
    stamp(3,2)
    U=SL(2); X=24
    for k in range(10):
        a(f"v_lshlrev_b32 v{U+2*k}, 16, v{X+k}"); a(f"v_and_b32 v{U+2*k+1}, s61, v{X+k}")
    a(f"v_add_f32 v14, v{U}, v{U+1}"); a(f"v_add_f32 v15, v{U+2}, v{U+3}")
    for k in range(4,20,2):
        a(f"v_add_f32 v14, v14, v{U+k}"); a(f"v_add_f32 v15, v15, v{U+k+1}")
    a("v_add_f32 v14, v14, v15")
    def red32(v,t):
        for ctrl in ("quad_perm:[1,0,3,2]","quad_perm:[2,3,0,1]","row_half_mirror","row_mirror"): dpp("v_add_f32",v,ctrl)
        xrow("v_add_f32",v,t,steps=(16,))
    red32(14,15)
    a("s_mov_b32 s62, 0x3acccccd")
    a("v_mul_f32 v14, s62, v14")
    for k in range(20): a(f"v_sub_f32 v{U+20+k}, v{U+k}, v14")
    a(f"v_mul_f32 v16, v{U+20}, v{U+20}"); a(f"v_mul_f32 v17, v{U+21}, v{U+21}")
    for k in range(2,20,2):
        a(f"v_fmac_f32 v16, v{U+20+k}, v{U+20+k}"); a(f"v_fmac_f32 v17, v{U+21+k}, v{U+21+k}")
    a("v_add_f32 v16, v16, v17")
    red32(16,15)
    a("v_mul_f32 v16, s62, v16")
    a("v_cvt_pk_bf16_f32 v15, v14, v16"); a("v_lshlrev_b32 v14, 16, v15"); a("v_and_b32 v16, s61, v15")
    a("v_add_f32 v16, 0x3727c5ac, v16"); a("v_cvt_pk_bf16_f32 v16, v16, v16"); a("v_and_b32 v16, s61, v16")
    a("v_sqrt_f32 v16, v16"); a("s_nop 0"); a("v_cvt_pk_bf16_f32 v16, v16, v16"); a("v_and_b32 v16, s61, v16")
    a("v_rcp_f32 v16, v16")
    for k in range(20): a(f"v_sub_f32 v{U+k}, v{U+k}, v14")
    for k in range(10): a(f"v_cvt_pk_bf16_f32 v{X+k}, v{U+2*k}, v{U+2*k+1}")
    for k in range(10):
        a(f"v_lshlrev_b32 v{U+2*k}, 16, v{X+k}"); a(f"v_and_b32 v{U+2*k+1}, s61, v{X+k}")
    for k in range(20): a(f"v_mul_f32 v{U+k}, v{U+k}, v16")
    for k in range(10): a(f"v_cvt_pk_bf16_f32 v{X+k}, v{U+2*k}, v{U+2*k+1}")
    for k in range(10): a(f"v_min_u32 v{X+k}, -2, v{X+k}")
    for k in range(5): a(f"ds_write_b64 v12, v[{X+2*k}:{X+2*k+1}] offset:{LX+256*k}")
    stamp(4,2)
    g.lab("L_unit3")
    a("v_bfe_u32 v36, v1, 3, 1"); a("v_mul_u32_u24 v36, 1280, v36"); a("v_lshl_add_u32 v37, v22, 1, v36")
    a("s_mov_b32 s61, 0x01000100"); a("s_mov_b32 s62, 0x03020302")
    a("s_waitcnt vmcnt(0)")
    a("s_cmp_lg_u32 s56, 4"); a("s_cbranch_scc1 L_u2a")
    stamp(3,2)
    a("v_mov_b32 v21, 0")
    a("buffer_load_dword v20, v21, s[44:47], 0 offen sc1")
    g.lab("L_u2a")
    a("s_mov_b32 s80, 0")
    g.lab("L_u2x")
    for k in range(3): a(f"ds_read_b64 v[{14+2*k}:{15+2*k}], v37 offset:{LX+8*k}")
    a("s_waitcnt lgkmcnt(0)")
    ldsvalid([14,15,16,17,18,19],36)
    a("s_cbranch_scc1 L_u2b")
    retry("L_u2x",1,0x100000,lds=True)
    g.lab("L_u2b")
    def buildX(src,i):
        A=28+4*(i%2)
        a(f"v_perm_b32 v36, v{src+i//2}, v{src+i//2}, s{61+i%2}")
        for r in range(4): a(f"v_and_b32 v{A+r}, v36, v{6+r}")
    buildX(14,0)
    for i in range(12):
        if i==8: a("s_cmp_eq_u32 s70, 8"); a("s_cbranch_scc1 L_u8")
        if i<11: buildX(14,i+1)
        else: a("s_nop 0")
        C="0" if i==0 else "v[40:43]"
        a(f"v_mfma_f32_16x16x32_bf16 v[40:43], {r4(28+4*(i%2))}, {r4(SL(32+i))}, {C}")
    g.lab("L_u8")
    a("s_cmp_eq_u32 s56, 4"); a("s_cbranch_scc1 L_u2c")
    a("s_nop 5")
    for k in range(4): a(f"v_min_u32 v{40+k}, -2, v{40+k}")
    a(f"ds_write_b128 v13, v[40:43] offset:{LU}")
    a("s_branch L_pref")
    g.lab("L_u2c")
    a("s_nop 3")
    a("s_mov_b32 s80, 0")
    g.lab("L_u2w")
    for k in range(3): a(f"ds_read_b128 {r4(28+4*k)}, v2 offset:{LU+1024*(k+1)}")
    a("s_waitcnt lgkmcnt(0)")
    ldsvalid(list(range(28,40)),44)
    a("s_cbranch_scc1 L_u2ok")
    retry("L_u2w",1,0x100000,lds=True)
    g.lab("L_u2ok")
    pkadd(40,28); pkadd(32,36); pkadd(40,32)
    stamp(4,2)
    a("s_waitcnt vmcnt(0)")
    rootpoll("B",20)
    stamp(5,2)
    tag(40)
    a("buffer_store_dwordx4 v[40:43], v2, s[40:43], s75 offen sc1")
    a("s_branch L_pref")

    g.lab("L_poller")
    prio(3)
    stamp(3,2)
    a(f"s_waitcnt vmcnt({32-RPOS})")
    rootpoll("A",20)
    stamp(5,2)
    a(f"ds_write_b32 v21, v20 offset:{LN_}")
    a("v_lshrrev_b32 v18, 5, v1"); a("v_lshlrev_b32 v18, 10, v18"); a("v_and_b32 v19, 0x1f0, v2"); a("v_add_u32 v18, v18, v19")
    a("v_and_b32 v19, 1, v3"); a("v_lshlrev_b32 v19, 3, v19"); a("v_lshl_add_u32 v19, v4, 4, v19")
    a("s_lshl_b32 s61, s57, 12"); a("s_lshl_b32 s62, s58, 9"); a("s_add_u32 s61, s61, s62"); a(f"s_add_u32 s61, s61, {QP_OFF}")
    a("s_mov_b32 s80, 0")
    g.lab("L_w0_poll")
    a("buffer_load_dwordx4 v[28:31], v18, s[40:43], s61 offen sc1")
    a("buffer_load_dwordx4 v[32:35], v18, s[40:43], s61 offen offset:2048 sc1")
    a("s_waitcnt vmcnt(0)")
    untag([28,32],16)
    a("s_cbranch_scc1 L_w0_ok")
    retry("L_w0_poll",SLEEP2)
    g.lab("L_w0_ok")
    stamp(6,2)
    pkadd(28,32)
    for k in range(4): a(f"v_mov_b32 v{32+k}, v{28+k}")
    a("s_nop 0")
    for k in range(4): a(f"v_permlane32_swap_b32 v{28+k}, v{32+k}")
    pkadd(28,32)
    a("v_cvt_pk_bf16_f32 v28, v28, v29"); a("v_cvt_pk_bf16_f32 v29, v30, v31")
    a("v_min_u32 v28, -2, v28"); a("v_min_u32 v29, -2, v29")
    a(f"ds_write_b64 v19, v[28:29] offset:{LQ}")
    a("s_branch L_extras")

    g.lab("L_wdown")
    srd(52,20,1728*640*2)
    a("s_mul_i32 s77, s83, 205"); a("s_lshr_b32 s77, s77, 10")
    a("s_mul_i32 s62, s77, 5"); a("s_sub_u32 s62, s83, s62"); a("s_lshl_b32 s62, s62, 8")
    a("s_mul_i32 s61, s77, 81920"); a("s_add_u32 s61, s61, s62")
    a("v_mul_u32_u24 v36, 20480, v3"); a("v_lshl_add_u32 v36, v4, 4, v36")
    for t in range(16):
        a(f"buffer_load_dwordx4 {r4(SL(32+t))}, v36, s[52:55], s61 offen offset:{(t%4)*1280}{wnt}")
        a("s_add_u32 s61, s61, 5120" if t%4==3 else "s_nop 0")
    a("s_branch L_qw")
    g.lab("L_ffn2")
    GA=SL(0); GB=SL(4); GG=SL(5); GU=SL(6); TA=SL(7); TB=SL(7)+1; HC=SL(8)
    a("s_lshl_b32 s61, s77, 12"); a(f"s_add_u32 s61, s61, {F1_OFF}")
    a("s_mov_b32 s80, 0")
    g.lab("L_w1_poll")
    for k in range(4): a(f"buffer_load_dwordx4 {r4(GA+4*k)}, v2, s[40:43], s61 offen offset:{1024*k} sc1")
    a("s_waitcnt vmcnt(0)")
    untag([GA+4*k for k in range(4)],TB)
    a("s_cbranch_scc1 L_w1_ok")
    retry("L_w1_poll",SLEEP2)
    g.lab("L_w1_ok")
    stamp(6,2)
    pkadd(GA,GA+4); pkadd(GA+8,GA+12); pkadd(GA,GA+8)
    a(f"v_and_b32 v{TB}, 8, v1"); a(f"v_cmp_eq_u32 vcc, 0, v{TB}")
    a("s_mov_b32 s61, 0xffff0000")
    for k in range(4): a(f"v_mov_b32_dpp v{GB+k}, v{GA+k} row_ror:8 {DPPF}")
    for k in range(4):
        a(f"v_cndmask_b32 v{GG+k}, v{GB+k}, v{GA+k}, vcc"); a(f"v_cndmask_b32 v{GU+k}, v{GA+k}, v{GB+k}, vcc")
    a("s_mov_b32 s62, 0x3d372713")
    a("s_mov_b32 s74, 0xc0135761")
    for k in range(4):
        gk=GG+k; uk=GU+k
        a(f"v_cvt_pk_bf16_f32 v{TA}, v{gk}, v{uk}"); a(f"v_lshlrev_b32 v{gk}, 16, v{TA}"); a(f"v_and_b32 v{uk}, s61, v{TA}")
        a(f"v_mul_f32 v{TB}, v{gk}, v{gk}"); a(f"v_mul_f32 v{TB}, s62, v{TB}"); a(f"v_fma_f32 v{TB}, v{TB}, v{gk}, v{gk}")
        a(f"v_mul_f32 v{TB}, s74, v{TB}"); a(f"v_exp_f32 v{TB}, v{TB}"); a("s_nop 0"); a(f"v_add_f32 v{TB}, 1.0, v{TB}"); a(f"v_rcp_f32 v{TB}, v{TB}"); a("s_nop 0")
        a(f"v_mul_f32 v{TB}, v{gk}, v{TB}"); a(f"v_cvt_pk_bf16_f32 v{TB}, v{TB}, v{TB}"); a(f"v_and_b32 v{TB}, s61, v{TB}")
        a(f"v_mul_f32 v{gk}, v{TB}, v{uk}")
    a(f"v_cvt_pk_bf16_f32 v{GU}, v{GG}, v{GG+1}"); a(f"v_cvt_pk_bf16_f32 v{GU+1}, v{GG+2}, v{GG+3}")
    a(f"v_lshrrev_b32 v{TA}, 1, v3"); a(f"v_lshlrev_b32 v{TA}, 7, v{TA}"); a(f"v_and_b32 v{TB}, 7, v1"); a(f"v_lshl_add_u32 v{TA}, v{TB}, 4, v{TA}"); a(f"v_and_b32 v{TB}, 1, v3"); a(f"v_lshl_add_u32 v{TA}, v{TB}, 3, v{TA}")
    a(f"ds_write_b64 v{TA}, v[{GU}:{GU+1}] offset:{LH}")
    a(f"v_bfe_u32 v{TB}, v1, 3, 1"); a(f"v_lshlrev_b32 v{TB}, 7, v{TB}"); a(f"v_lshl_add_u32 v{TB}, v3, 5, v{TB}")
    a(f"ds_read_b128 {r4(HC)}, v{TB} offset:{LH}"); a(f"ds_read_b128 {r4(HC+4)}, v{TB} offset:{LH+16}")
    a("s_mov_b32 s61, 0x01000100"); a("s_mov_b32 s62, 0x03020302")
    a("s_waitcnt lgkmcnt(0)")
    buildX(HC,0)
    for i in range(16):
        if i<15: buildX(HC,i+1)
        else: a("s_nop 0")
        C="0" if i==0 else "v[40:43]"
        a(f"v_mfma_f32_16x16x32_bf16 v[40:43], {r4(28+4*(i%2))}, {r4(SL(32+i))}, {C}")
    a("s_lshl_b32 s61, s83, 10"); a(f"s_add_u32 s61, s61, {F2_OFF}")
    a("s_nop 5")
    tag(40)
    a("buffer_store_dwordx4 v[40:43], v2, s[40:43], s61 offen sc1")
    a("s_mov_b32 s3, 4")
    prio(1)
    a("s_branch L_exl")

    o.append('.section .rodata,"a"'); o.append(".p2align 6"); o.append(f".amdhsa_kernel {NAME}")
    for x in ["next_free_vgpr 256","next_free_sgpr 102","accum_offset 256","group_segment_fixed_size 0","kernarg_size 96","user_sgpr_count 2","user_sgpr_kernarg_segment_ptr 1","system_sgpr_workgroup_id_x 1","float_denorm_mode_32 3"]:
        o.append("  .amdhsa_"+x)
    o.append(".end_amdhsa_kernel")
    return "\n".join(o)+"\n"

if __name__=="__main__":
    import argparse
    ap=argparse.ArgumentParser(); ap.add_argument("out"); ap.add_argument("kw",nargs="*")
    ar=ap.parse_args()
    kw={}
    for x in ar.kw:
        k,v=x.split("="); kw[k]=int(v) if v.lstrip("-").isdigit() else v
    open(ar.out,"w").write(gen(**kw))
```

```python
import sys
NAME="parallel_sum__gqa_block_cached__geglu_ffn__decode_kernel"
HDR=open("parallel_sum__gqa_block_cached__geglu_ffn__decode.s.ref").read().split("; Override launch")[0]

QP_OFF=0x0; F1_OFF=128*1024; ST_OFF=F1_OFF+108*1024; F2_OFF=260*1024; Y_OFF=F2_OFF+108*5120; WS_SIZE=Y_OFF+256*2560
NROOT=16; NFREE=20
assert ST_OFF+16*1024<=NROOT*16*1024<=F2_OFF
STAMP_OFF=0x8000000
LQ=0; LF=256; LO=512; LO_STR=544; LY=LO+8*LO_STR; LY_STR=2560; LX=LY+8*LY_STR; LU=LX+2560; LDS_BYTES=LU+4096
LOG2E=0x3fb8aa3b
SCALE=0x3db504f3
DPPF="row_mask:0xf bank_mask:0xf"

class G:
    def __init__(s): s.o=[]; s.vm=[]
    def a(s,x): s.o.append("    "+x)
    def lab(s,x): s.o.append(x+":")
    def vmem(s,tag,x): s.a(x); s.vm.append(tag)
    def vreset(s): s.vm=[]
    def wait(s,tag):
        i=len(s.vm)-1-s.vm[::-1].index(tag)
        n=len(s.vm)-1-i
        assert n<=63
        s.a(f"s_waitcnt vmcnt({n})")

def mix(A,B):
    out=[]; ia=ib=0
    while ia<len(A) or ib<len(B):
        if ib>=len(B) or (ia<len(A) and ia*len(B)<=ib*len(A)): out.append(A[ia]); ia+=1
        else: out.append(B[ib]); ib+=1
    return out

def gen(KNT=1, WNT=1, ONT=1, stamps=0, NPRE0=8, UB=39, NEX=8, SLEEP0=0, SLEEP1=16, SLEEP2=8, PAD=0, PRIO=1, OLAST=0, RPOS=20, DBG=0, BRK=1, OPOS=-1, ROT=0):
    g=G(); a=g.a
    knt=" nt" if KNT else ""; wnt=" nt" if WNT else ""; ont=" nt" if ONT else ""
    def stamp(k,mode=1):
        if stamps==mode or (stamps and k in (0,1,2,7) and mode==1): a(f"s_memrealtime s[{84+2*k}:{85+2*k}]")
    def brk():
        if BRK: a("s_nop 0")
    def prio(p):
        if PRIO: a(f"s_setprio {p}")
    def xrow(op,v,t,steps=(16,32)):
        for st in steps:
            a(f"v_mov_b32 v{t}, v{v}"); a("s_nop 1"); a(f"v_permlane{st}_swap_b32 v{v}, v{t}"); a(f"{op} v{v}, v{v}, v{t}")
    def dpp(op,v,ctrl,nop=True):
        if nop: a("s_nop 1")
        a(f"{op}_dpp v{v}, v{v}, v{v} {ctrl} {DPPF}")
    def srd(d,p,size):
        a(f"s_mov_b32 s{d}, s{p}"); a(f"s_mov_b32 s{d+1}, s{p+1}"); a(f"s_mov_b32 s{d+2}, {size:#x}"); a(f"s_mov_b32 s{d+3}, 0x20000")
    def allvalid(regs,t):
        if len(regs)==2: a(f"v_max_u32 v{t}, v{regs[0]}, v{regs[1]}"); k=2
        else: a(f"v_max3_u32 v{t}, v{regs[0]}, v{regs[1]}, v{regs[2]}"); k=3
        while k+1<len(regs):
            a(f"v_max3_u32 v{t}, v{t}, v{regs[k]}, v{regs[k+1]}"); k+=2
        if k<len(regs): a(f"v_max_u32 v{t}, v{t}, v{regs[k]}")
        a(f"v_cmp_eq_u32 vcc, -1, v{t}")
        a("s_cmp_eq_u64 vcc, 0")
    def retry(lab,sl,lim=0x10000):
        if DBG&1 and lab!="L_qwait": return
        a(f"s_sleep {sl}"); a("s_add_u32 s80, s80, 1"); a(f"s_cmp_lt_u32 s80, {lim:#x}"); a(f"s_cbranch_scc1 {lab}")
    def rootpoll(tag,first_issued=False):
        a("s_mov_b32 s80, 0")
        a(f"v_min_u32 v17, {NROOT-1}, v1"); a("v_lshlrev_b32 v17, 2, v17")
        if first_issued: a(f"s_branch L_rp_chk{tag}")
        g.lab(f"L_rp{tag}")
        a("buffer_load_dword v16, v17, s[44:47], 0 offen sc1")
        a("s_waitcnt vmcnt(0)")
        g.lab(f"L_rp_chk{tag}")
        a("v_cmp_eq_u32 vcc, 0, v16"); a("s_cmp_eq_u64 vcc, 0"); a(f"s_cbranch_scc1 L_rp_ok{tag}")
        retry(f"L_rp{tag}",SLEEP1)
        g.lab(f"L_rp_ok{tag}")
    def masks(t0,t1):
        a(f"v_and_b32 v{t0}, 1, v1"); a(f"v_lshlrev_b32 v{t0}, 4, v{t0}"); a(f"v_mov_b32 v{t1}, 0xffff"); a(f"v_lshlrev_b32 v{t0}, v{t0}, v{t1}")
        a(f"v_bfe_u32 v{t1}, v1, 1, 2")
        for r in range(4):
            a(f"v_cmp_eq_u32 vcc, {r}, v{t1}"); a("s_nop 1"); a(f"v_cndmask_b32 v{6+r}, 0, v{t0}, vcc")
    def sentinel4(b):
        for k in range(4): a(f"v_mov_b32 v{b+k}, -1")
    def yslot(d,t):
        a(f"s_lshl_b32 s{d}, s58, 7"); a(f"s_lshl_b32 s{t}, s57, 2"); a(f"s_add_u32 s{d}, s{d}, s{t}"); a(f"s_add_u32 s{d}, s{d}, s59"); a(f"s_mul_i32 s{d}, s{d}, 2560"); a(f"s_add_u32 s{d}, s{d}, {Y_OFF}")
    def pkadd(d,s):
        for k in range(2): a(f"v_pk_add_f32 v[{d+2*k}:{d+2*k+1}], v[{d+2*k}:{d+2*k+1}], v[{s+2*k}:{s+2*k+1}]")
    def scatter_reduce(b,dst):
        a("s_nop 1")
        a(f"v_add_f32_dpp v36, v{b}, v{b} row_ror:8 row_mask:0xf bank_mask:0x3")
        a(f"v_add_f32_dpp v36, v{b+1}, v{b+1} row_ror:8 row_mask:0xf bank_mask:0xc")
        a(f"v_add_f32_dpp v37, v{b+2}, v{b+2} row_ror:8 row_mask:0xf bank_mask:0x3")
        a(f"v_add_f32_dpp v37, v{b+3}, v{b+3} row_ror:8 row_mask:0xf bank_mask:0xc")
        a(f"v_add_f32_dpp v{dst}, v36, v36 row_shl:4 row_mask:0xf bank_mask:0x5")
        a("s_nop 0")
        a(f"v_add_f32_dpp v{dst}, v37, v37 row_shr:4 row_mask:0xf bank_mask:0xa")
        xrow("v_add_f32",dst,36)
    SL=lambda i: 48+4*i
    def r4(b): return f"v[{b}:{b+3}]"
    o=g.o
    o.append(HDR.rstrip("\n"))
    o.append(f"; @launch grid=(256,1,1) block=(512,1,1) lds={LDS_BYTES}")
    o.append('.amdgcn_target "amdgcn-amd-amdhsa--gfx950"'); o.append(".text"); o.append(f".globl {NAME}"); o.append(".p2align 8"); o.append(f".type {NAME},@function"); o.append(f"{NAME}:")
    a("s_cmp_ge_u32 s2, 256"); a("s_cbranch_scc1 L_end")
    a("s_load_dwordx16 s[4:19], s[0:1], 0"); a("s_load_dwordx8 s[20:27], s[0:1], 64")
    stamp(0)
    if PAD: a("s_memrealtime s[100:101]")
    a("v_lshrrev_b32 v3, 6, v0"); a("v_and_b32 v1, 63, v0"); a("v_readfirstlane_b32 s56, v3"); a("v_lshlrev_b32 v2, 4, v1")
    a("s_and_b32 s57, s2, 7"); a("s_lshl_b32 s57, s57, 2"); a("s_lshr_b32 s61, s2, 3"); a("s_and_b32 s62, s61, 3"); a("s_add_u32 s57, s57, s62")
    a("s_lshr_b32 s58, s2, 7")
    a("s_lshr_b32 s59, s2, 5"); a("s_and_b32 s59, s59, 3")
    a("s_lshl_b32 s60, s61, 2"); a("s_lshr_b32 s62, s2, 1"); a("s_and_b32 s62, s62, 3"); a("s_or_b32 s60, s60, s62")
    a("s_lshl_b32 s81, s58, 5"); a("s_add_u32 s81, s81, s57")
    a("s_lshl_b32 s64, s81, 20"); a("s_lshl_b32 s62, s59, 18"); a("s_add_u32 s64, s64, s62")
    a("s_lshr_b32 s62, s56, 2"); a("s_lshl_b32 s62, s62, 17"); a("s_add_u32 s64, s64, s62")
    a("s_and_b32 s62, s56, 3"); a("s_lshl_b32 s62, s62, 10"); a("s_add_u32 s64, s64, s62"); a("s_mov_b32 s65, s64")
    a("s_mov_b32 s82, 0"); a("s_mov_b32 s83, 0"); a("s_mov_b32 s63, 0"); a("s_mov_b32 s3, 0")
    a("v_lshrrev_b32 v3, 4, v1"); a("v_and_b32 v4, 15, v1")
    a("s_bitcmp1_b32 s2, 0")
    a(f"s_cselect_b32 s61, 0, {NFREE}"); a("s_mov_b32 s79, 0"); a("s_mov_b32 s78, 3456"); a("s_cselect_b32 s78, 8192, s78"); a("s_cselect_b32 s76, 8, 7"); a("s_cselect_b32 s77, 15, 7")
    a(f"s_mov_b32 s75, {F1_OFF}"); a(f"s_cselect_b32 s75, {QP_OFF}, s75")
    a("s_sub_u32 s66, s60, s61")
    a("s_cselect_b32 s67, 0, %d"%(0 if DBG&2 else 7))
    a("s_and_b32 s63, s66, 3"); a("s_lshr_b32 s74, s66, 2")
    a("s_lshl_b32 s62, s66, 10"); a("s_add_u32 s75, s75, s62")
    a("s_mul_i32 s68, s63, 160"); a("s_and_b32 s62, s56, 3"); a("s_mul_i32 s62, s62, 40"); a("s_add_u32 s68, s68, s62")
    a("v_mad_u32_u24 v36, v3, 10, s68"); a("v_mul_lo_u32 v36, v36, s78")
    a("s_lshl_b32 s62, s74, s76"); a("v_and_b32 v37, s77, v1"); a("v_lshl_add_u32 v36, v37, 4, v36"); a("v_add_u32 v36, s62, v36"); a("v_mov_b32 v37, 0")
    a("v_and_b32 v38, 8, v1"); a("v_cmp_eq_u32 vcc, 0, v38")
    a("s_cmp_lt_u32 s60, 108"); a("s_cselect_b32 s61, %d, 0"%(0 if DBG&2 else 3)); a("s_cmp_ge_u32 s60, 48"); a("s_cselect_b32 s62, %d, 0"%(0 if DBG&4 else 5))
    a("s_bitcmp1_b32 s2, 0"); a("s_cselect_b32 s62, s61, s62")
    a("s_cmp_eq_u32 s56, 3"); a("s_cselect_b32 s3, s62, 0")
    a("s_cmp_eq_u32 s56, 0"); a("s_cselect_b32 s3, 1, s3")
    a("s_cmp_eq_u32 s56, 1"); a("s_cselect_b32 s3, 6, s3")
    a("s_cmp_ge_u32 s56, 4"); a("s_cselect_b32 s3, s67, s3")
    a("s_and_b32 s61, s2, 1"); a("s_lshl_b32 s61, s61, 8"); a("s_or_b32 s61, s61, s60"); a(f"s_cmp_lt_u32 s61, {0 if DBG&2 else NROOT}"); a("s_cselect_b32 s69, 1, 0")
    sentinel4(48)
    a("s_waitcnt lgkmcnt(0)")
    srd(28,6,64<<20); srd(40,26,WS_SIZE); srd(44,24,256)
    a("s_cmp_eq_u32 s3, 7"); a("s_cbranch_scc0 L_lo")
    prio(3)
    a("s_bitcmp1_b32 s2, 0"); a("s_cselect_b32 s70, s10, s16"); a("s_cselect_b32 s71, s11, s17"); a("s_cselect_b32 s72, s10, s18"); a("s_cselect_b32 s73, s11, s19")
    a("v_mov_b32 v38, s72"); a("v_mov_b32 v39, s70"); a("v_cndmask_b32 v10, v38, v39, vcc")
    a("v_mov_b32 v38, s73"); a("v_mov_b32 v39, s71"); a("v_cndmask_b32 v11, v38, v39, vcc")
    a("v_lshl_add_u64 v[10:11], v[36:37], 0, v[10:11]")
    for i in range(10):
        a(f"global_load_dwordx4 {r4(SL(32+i))}, v[10:11], off{wnt}")
        if i<9: a("v_lshl_add_u64 v[10:11], v[10:11], 0, s[78:79]")
    a("s_branch L_pref")
    g.lab("L_lo")
    a("s_cmp_eq_u32 s69, 0"); a("s_cbranch_scc1 L_lo2")
    a("s_lshl_b32 s61, s60, 3"); a("s_add_u32 s61, s61, s56"); a("s_lshl_b32 s61, s61, 11")
    a("buffer_store_dwordx4 v[48:51], v2, s[40:43], s61 offen sc1")
    a("buffer_store_dwordx4 v[48:51], v2, s[40:43], s61 offen offset:1024 sc1")
    a("v_lshlrev_b32 v36, 2, v1"); a(f"ds_write_b32 v36, v48 offset:{LQ}")
    masks(36,37)
    a("s_lshl_b32 s62, s60, 2"); a("v_mov_b32 v52, 1"); a("v_mov_b32 v53, s62")
    a("s_mov_b32 s82, 1")
    stamp(3,2)
    a("s_waitcnt vmcnt(0) lgkmcnt(0)")
    a("s_barrier")
    stamp(4,2)
    a("s_cmp_lg_u32 s56, 1"); a("s_cbranch_scc1 L_lo3")
    a("s_mov_b64 exec, 1")
    a("buffer_store_dword v52, v53, s[44:47], 0 offen sc1")
    a("s_mov_b64 exec, -1")
    if stamps==2:
        a("s_waitcnt vmcnt(0)"); stamp(5,2)
    a("s_branch L_pref")
    g.lab("L_lo2")
    a("s_cmp_lg_u32 s56, 1"); a("s_cbranch_scc1 L_lo3")
    srd(48,4,2560)
    a("v_lshrrev_b32 v36, 5, v1"); a("v_mul_u32_u24 v36, 1280, v36"); a("v_and_b32 v37, 31, v1"); a("v_lshl_add_u32 v12, v37, 3, v36")
    for k in range(5): a(f"buffer_load_dwordx2 v[{14+2*k}:{15+2*k}], v12, s[48:51], 0 offen offset:{256*k}")
    g.lab("L_lo3")
    a("s_cmp_lg_u32 s56, 2"); a("s_cbranch_scc1 L_pref")
    yslot(61,62)
    a("buffer_store_dwordx4 v[48:51], v2, s[40:43], s61 offen sc1")
    a("buffer_store_dwordx4 v[48:51], v2, s[40:43], s61 offen offset:1024 sc1")
    a("s_mov_b64 exec, 0xffffffff")
    a("buffer_store_dwordx4 v[48:51], v2, s[40:43], s61 offen offset:2048 sc1")
    a("s_mov_b64 exec, -1")
    g.lab("L_pref")
    prio(2)
    g.vreset()
    def kvload(kind,i,slot):
        srdn="s[28:31]" if kind=="K" else "s[32:35]"
        p=64 if kind=="K" else 65
        g.vmem((kind,i), f"buffer_load_dwordx4 {r4(SL(slot))}, v2, {srdn}, s{p} offen{knt}")
        a(f"s_add_u32 s{p}, s{p}, 4096")
    Vs=[("V",i) for i in range(32)]; Os=[("O",i) for i in range(20)]
    R=mix(Vs,Os[:20-OLAST])+Os[20-OLAST:]
    if OPOS>=0: R=Vs[:OPOS]+Os+Vs[OPOS:]
    slot_of={}
    for i in range(32): slot_of[("K",i)]=i
    for k,t in enumerate(R): slot_of[t]=(32+k) if k<20 else k-20
    def sload(t):
        k=slot_of[t]
        if t[0] in "KV": kvload(t[0],t[1],k)
        elif DBG&8 and t[1]%8!=0: pass
        else:
            aa,cb=divmod(t[1],5)
            so="s72" if aa<2 else "s73"
            g.vmem(t, f"buffer_load_dwordx4 {r4(SL(k))}, v5, s[36:39], {so} offen offset:{(aa%2)*1280+cb*256}{ont}")
            brk()
    for i in range(32):
        if i==NPRE0:
            a("s_bitcmp1_b32 s82, 0"); a("s_cbranch_scc1 L_nobar0")
            sentinel4(24)
            a("v_lshlrev_b32 v36, 2, v1"); a(f"ds_write_b32 v36, v24 offset:{LQ}")
            a("s_and_b32 s61, s56, 3"); a("s_lshl_b32 s61, s61, 10"); a("v_add_u32 v13, s61, v2"); a(f"ds_write_b128 v13, v[24:27] offset:{LU}")
            masks(36,37)
            a("s_cmp_eq_u32 s3, 6"); a("s_cbranch_scc1 L_ln")
            g.lab("L_bar0")
            a("s_waitcnt lgkmcnt(0)")
            a("s_barrier")
            a("s_cmp_eq_u32 s3, 7"); a("s_cbranch_scc1 L_unit2")
            g.lab("L_nobar0")
        if i==RPOS:
            a("s_cmp_lg_u32 s3, 1"); a("s_cbranch_scc1 L_norp")
            a(f"v_min_u32 v17, {NROOT-1}, v1"); a("v_lshlrev_b32 v17, 2, v17")
            a("buffer_load_dword v16, v17, s[44:47], 0 offen sc1")
            g.lab("L_norp")
        sload(("K",i))
    a("s_cmp_eq_u32 s3, 1"); a("s_cbranch_scc1 L_role")
    g.lab("L_extras")
    prio(1)
    a("v_mov_b32 v45, 0"); a("v_mov_b32 v23, 0"); a("v_mov_b32 v44, 0"); a("v_mov_b32 v22, 0")
    srd(32,8,64<<20); srd(36,12,4096*640*2)
    a("v_mul_u32_u24 v5, 5120, v3"); a("v_lshl_add_u32 v5, v4, 4, v5")
    a("s_lshl_b32 s72, s57, 7"); a("s_lshl_b32 s62, s56, 4"); a("s_add_u32 s72, s72, s62"); a("s_mul_i32 s72, s72, 1280"); a("s_add_u32 s73, s72, 2560")
    a("s_cmp_eq_u32 s3, 3"); a("s_cbranch_scc1 L_wdown")
    g.lab("L_exl")
    for t in R[:NEX]:
        sload(t)
    a("s_cmp_eq_u32 s3, 4"); a("s_cbranch_scc1 L_rest")
    g.lab("L_qw")
    stamp(1)
    a(f"v_lshlrev_b32 v36, 4, v4")
    a("s_mov_b32 s80, 0")
    g.lab("L_qwait")
    a(f"ds_read_b128 v[10:13], v36 offset:{LQ}")
    a("s_waitcnt lgkmcnt(0)")
    allvalid([10,11,12,13],37)
    a("s_cbranch_scc1 L_qok")
    retry("L_qwait",2,0x100000)
    g.lab("L_qok")
    stamp(2)
    prio(3)

    a("s_mov_b32 s74, 0x%x"%SCALE); a("s_mov_b32 s75, 0xffff0000")
    P=28; TT=36
    for d in range(4):
        g.wait(("K",8*d+7))
        for j in range(4):
            for t in range(8):
                src2="0" if j==0 else f"v{P+t}"
                a(f"v_dot2_f32_bf16 v{P+t}, v{SL(8*d+t)+j}, v{10+j}, {src2}")
        for h in range(2):
            b=P+4*h
            a(f"v_add_f32_dpp v{TT+2*h}, v{b}, v{b} row_ror:8 row_mask:0xf bank_mask:0x3")
            a(f"v_add_f32_dpp v{TT+2*h}, v{b+1}, v{b+1} row_ror:8 row_mask:0xf bank_mask:0xc")
            a(f"v_add_f32_dpp v{TT+2*h+1}, v{b+2}, v{b+2} row_ror:8 row_mask:0xf bank_mask:0x3")
            a(f"v_add_f32_dpp v{TT+2*h+1}, v{b+3}, v{b+3} row_ror:8 row_mask:0xf bank_mask:0xc")
        for h in range(2):
            a(f"v_add_f32_dpp v{TT+4+h}, v{TT+2*h}, v{TT+2*h} row_shl:4 row_mask:0xf bank_mask:0x5")
            a(f"v_add_f32_dpp v{TT+4+h}, v{TT+2*h+1}, v{TT+2*h+1} row_shr:4 row_mask:0xf bank_mask:0xa")
        a("s_nop 0")
        for qp in ("[1,0,3,2]","[2,3,0,1]"):
            for h in range(2): a(f"v_add_f32_dpp v{TT+4+h}, v{TT+4+h}, v{TT+4+h} quad_perm:{qp} {DPPF}")
            a("s_nop 0")
        a(f"v_cvt_pk_bf16_f32 v{TT}, v{TT+4}, v{TT+5}")
        a(f"v_lshlrev_b32 v{TT+1}, 16, v{TT}"); a(f"v_and_b32 v{TT+2}, s75, v{TT}")
        a(f"v_mul_f32 v{TT+1}, s74, v{TT+1}"); a(f"v_mul_f32 v{TT+2}, s74, v{TT+2}")
        a(f"v_cvt_pk_bf16_f32 v{TT}, v{TT+1}, v{TT+2}")
        a(f"v_lshlrev_b32 v{14+2*d}, 16, v{TT}"); a(f"v_and_b32 v{15+2*d}, s75, v{TT}")
    a("v_max3_f32 v36, v14, v15, v16"); a("v_max3_f32 v37, v17, v18, v19"); a("v_max3_f32 v36, v36, v20, v21"); a("v_max_f32 v36, v36, v37")
    dpp("v_max_f32",36,"row_ror:4"); dpp("v_max_f32",36,"row_ror:8"); xrow("v_max_f32",36,37)
    a("s_mov_b32 s74, 0x%x"%LOG2E)
    a("v_mul_f32 v38, s74, v36")
    for k in range(8): a(f"v_fma_f32 v{14+k}, v{14+k}, s74, -v38")
    for k in range(8): a(f"v_exp_f32 v{14+k}, v{14+k}")
    a("s_nop 0")
    a("v_add_f32 v39, v14, v15"); a("v_add_f32 v36, v16, v17"); a("v_add_f32 v39, v39, v18"); a("v_add_f32 v36, v36, v19"); a("v_add_f32 v39, v39, v20"); a("v_add_f32 v36, v36, v21"); a("v_add_f32 v39, v39, v36")
    for k in range(8): a(f"v_cvt_pk_bf16_f32 v{14+k}, v{14+k}, v{14+k}")
    dpp("v_add_f32",39,"row_ror:4",nop=False); dpp("v_add_f32",39,"row_ror:8"); xrow("v_add_f32",39,37)
    a("v_min_u32 v38, -2, v38"); a("v_min_u32 v39, -2, v39")
    a("s_lshl_b32 s61, s81, 5"); a("s_lshl_b32 s62, s59, 3"); a("s_add_u32 s61, s61, s62"); a("s_add_u32 s61, s61, s56"); a("s_lshl_b32 s61, s61, 3"); a(f"s_add_u32 s61, s61, {ST_OFF}")
    a("v_mov_b32 v36, 0")
    a("s_mov_b64 exec, 1")
    a("buffer_store_dwordx2 v[38:39], v36, s[40:43], s61 offen sc1")
    a("s_mov_b64 exec, -1")
    stamp(3)
    a("s_cmp_eq_u32 s3, 3"); a("s_cbranch_scc1 L_ffn2")
    g.lab("L_rest")
    prio(0)
    for t in R[NEX:]:
        sload(t)
    a("s_cmp_eq_u32 s3, 5"); a("s_cbranch_scc1 L_c1")
    g.lab("L_vphase")
    beta=[0,2,1,3]
    def buildA(i):
        A=28+4*(i%2)
        for r in range(4):
            a(f"v_and_b32_dpp v{A+r}, v{14+i//4}, v{6+r} row_newbcast:{4*beta[i%4]} {DPPF}")
    a("v_lshlrev_b32 v36, 5, v4"); a("v_lshl_add_u32 v36, v3, 4, v36")
    a(f"s_mul_i32 s61, s56, {LO_STR}"); a("v_add_u32 v41, s61, v36")
    a("v_and_b32 v37, 1, v3"); a("v_lshlrev_b32 v37, 4, v37"); a("v_lshl_add_u32 v37, v4, 5, v37")
    a(f"s_mul_i32 s61, s56, {LY_STR}"); a("v_add_u32 v42, s61, v37")
    a("v_and_b32 v36, 7, v1"); a(f"v_mul_u32_u24 v40, {LO_STR}, v36"); a("v_lshl_add_u32 v40, v3, 4, v40"); a("s_lshl_b32 s61, s56, 6"); a("v_add_u32 v40, s61, v40")
    a("s_lshl_b32 s61, s59, 5"); a("v_lshl_add_u32 v43, v36, 2, s61")
    buildA(0)
    for i in range(32):
        if i<31: buildA(i+1)
        g.wait(("V",i))
        A=28+4*(i%2)
        C="0" if i==0 else "v[24:27]"
        a(f"v_mfma_f32_16x16x32_bf16 v[24:27], {r4(A)}, {r4(SL(slot_of[('V',i)]))}, {C}")
    a("s_mov_b64 exec, 0xffffffff")
    a("s_nop 6")
    a(f"ds_write_b128 v41, v[24:27] offset:{LO}")
    a("s_mov_b64 exec, -1")
    stamp(4)
    a("s_cmp_eq_u32 s56, 2"); a("s_cbranch_scc1 L_w2stats")
    a("s_cmp_eq_u32 s3, 5"); a("s_cbranch_scc1 L_w3pre")
    g.lab("L_bar2")
    a("s_waitcnt lgkmcnt(0)")
    a("s_barrier")
    stamp(5)
    a(f"ds_read_b128 v[36:39], v40 offset:{LO}")
    a(f"ds_read_b32 v44, v43 offset:{LF}")
    a("s_waitcnt vmcnt(0) lgkmcnt(0)")
    for k in range(4): a(f"v_mul_f32 v{36+k}, v44, v{36+k}")
    for ctrl in ("quad_perm:[1,0,3,2]","quad_perm:[2,3,0,1]","row_half_mirror"):
        for k in range(4): a(f"v_add_f32_dpp v{36+k}, v{36+k}, v{36+k} {ctrl} {DPPF}")
    for k in range(4): a(f"v_cvt_pk_bf16_f32 v{36+k}, v{36+k}, v{36+k}")
    vslots=sorted(slot_of[("V",i)] for i in range(32))
    YAs=vslots[0:5]; ABs=vslots[5:9]
    def AND(k,r): a(f"v_and_b32 v{SL(ABs[k])+r}, v{36+k}, v{6+r}")
    def M(cb,aa):
        C="0" if aa==0 else r4(SL(YAs[cb]))
        a(f"v_mfma_f32_16x16x32_bf16 {r4(SL(YAs[cb]))}, {r4(SL(ABs[aa]))}, {r4(SL(slot_of[('O',aa*5+cb)]))}, {C}")
    def W(cb): a(f"ds_write_b128 v42, {r4(SL(YAs[cb]))} offset:{LY+512*cb}")
    for r in range(4): AND(0,r)
    rest=[(k,r) for k in range(1,4) for r in range(4)]
    AND(*rest.pop(0)); AND(*rest.pop(0))
    for cb in range(5):
        M(cb,0)
        for _ in range(3 if cb<2 else 2):
            if rest: AND(*rest.pop(0))
    a("s_nop 0")
    for cb in range(5):
        for aa in range(1,4): M(cb,aa)
        if cb>=2: W(cb-2); a("s_nop 0")
        else: a("s_nop 1")
    a("s_nop 0"); W(3); a("s_nop 3"); W(4)
    a("v_lshlrev_b32 v36, 4, v0")
    yslot(61,62)
    a("s_waitcnt lgkmcnt(0)")
    a("s_barrier")
    stamp(6)
    a("s_cmp_ge_u32 s56, 3"); a("s_cbranch_scc1 L_fin")
    a("v_cmp_gt_u32 vcc, 160, v0"); a("s_and_saveexec_b64 s[76:77], vcc")
    for w in range(8): a(f"ds_read_b128 {r4(SL(w))}, v36 offset:{LY+LY_STR*w}")
    a("s_waitcnt lgkmcnt(0)" if stamps else "s_waitcnt lgkmcnt(4)")
    pkadd(SL(0),SL(1)); pkadd(SL(2),SL(3)); pkadd(SL(0),SL(2))
    a("s_waitcnt lgkmcnt(0)")
    pkadd(SL(4),SL(5)); pkadd(SL(6),SL(7)); pkadd(SL(4),SL(6)); pkadd(SL(0),SL(4))
    for k in range(4): a(f"v_min_u32 v{SL(0)+k}, -2, v{SL(0)+k}")
    a(f"buffer_store_dwordx4 {r4(SL(0))}, v36, s[40:43], s61 offen sc1")
    a("s_mov_b64 exec, -1")
    a("s_branch L_done")
    g.lab("L_fin")
    a("s_cmp_lg_u32 s3, 5"); a("s_cbranch_scc1 L_done")
    a("s_mov_b32 s80, 0")
    srd(52,22,2560)
    g.lab("L_fin_poll")
    a("s_mov_b32 s62, s63")
    for i in range(8):
        a(f"buffer_load_dwordx4 {r4(SL(i))}, v45, s[40:43], s62 offen sc1")
        if i<7: a("s_add_u32 s62, s62, 40960")
    a("s_waitcnt vmcnt(0)")
    allvalid(list(range(SL(0),SL(8))),36)
    a("s_cbranch_scc1 L_fin_ok")
    retry("L_fin_poll",4)
    g.lab("L_fin_ok")
    for i in range(1,8): pkadd(SL(0),SL(i))
    scatter_reduce(SL(0),38)
    a("v_cvt_pk_bf16_f32 v38, v38, v38"); a("v_lshlrev_b32 v38, 16, v38"); a("v_add_f32 v38, v46, v38")
    a("v_cvt_pk_bf16_f32 v38, v38, v38"); a("v_lshlrev_b32 v38, 16, v38"); a("v_add_f32 v38, v47, v38")
    a("v_cvt_pk_bf16_f32 v38, v38, v38")
    a("s_mov_b64 exec, 0xffff")
    a("buffer_store_short v38, v23, s[52:55], 0 offen")
    a("s_mov_b64 exec, -1")
    g.lab("L_done")
    if PAD:
        g.lab("L_pad")
        a("s_memrealtime s[98:99]"); a("s_waitcnt lgkmcnt(0)"); a("s_sub_u32 s98, s98, s100"); a(f"s_cmp_lt_u32 s98, {PAD*100}"); a("s_cbranch_scc1 L_pad")
    if stamps:
        stamp(7)
        a("s_waitcnt lgkmcnt(0)")
        a(f"s_add_u32 s52, s26, {STAMP_OFF}"); a("s_addc_u32 s53, s27, 0"); a("s_mov_b32 s54, 0x100000"); a("s_mov_b32 s55, 0x20000")
        for k in range(8): a(f"v_mov_b32 v{48+k}, s{84+2*k}")
        a("s_lshl_b32 s61, s2, 3"); a("s_add_u32 s61, s61, s56"); a("s_lshl_b32 s61, s61, 5")
        a("v_mov_b32 v36, 0"); a("s_mov_b64 exec, 1")
        a("buffer_store_dwordx4 v[48:51], v36, s[52:55], s61 offen"); a("buffer_store_dwordx4 v[52:55], v36, s[52:55], s61 offen offset:16")
    g.lab("L_end")
    a("s_endpgm")

    g.lab("L_w2stats")
    prio(3)
    a("v_and_b32 v36, 31, v1"); a("v_lshlrev_b32 v44, 3, v36"); a("v_lshlrev_b32 v45, 2, v36")
    a("s_lshl_b32 s61, s81, 8"); a(f"s_add_u32 s61, s61, {ST_OFF}")
    a("s_mov_b32 s80, 0")
    g.lab("L_w2_poll")
    a("buffer_load_dwordx2 v[36:37], v44, s[40:43], s61 offen sc1")
    a("s_waitcnt vmcnt(0)")
    allvalid([36,37],38)
    a("s_cbranch_scc1 L_w2_ok")
    retry("L_w2_poll",8)
    g.lab("L_w2_ok")
    a("v_mov_b32 v38, v36")
    for ctrl in ("quad_perm:[1,0,3,2]","quad_perm:[2,3,0,1]","row_half_mirror","row_mirror"): dpp("v_max_f32",38,ctrl)
    xrow("v_max_f32",38,39,steps=(16,))
    a("v_sub_f32 v36, v36, v38"); a("v_exp_f32 v36, v36"); a("s_nop 0"); a("v_mul_f32 v37, v36, v37")
    for ctrl in ("quad_perm:[1,0,3,2]","quad_perm:[2,3,0,1]","row_half_mirror","row_mirror"): dpp("v_add_f32",37,ctrl)
    xrow("v_add_f32",37,39,steps=(16,))
    a("v_rcp_f32 v37, v37"); a("s_nop 0"); a("v_mul_f32 v36, v36, v37")
    a(f"ds_write_b32 v45, v36 offset:{LF}")
    stamp(6,3)
    a("s_branch L_bar2")

    g.lab("L_wdown")
    srd(52,20,1728*640*2)
    a("s_mul_i32 s61, s60, 20480"); a("s_add_u32 s62, s61, 2560")
    for t in range(20):
        aa,cb=divmod(t,5)
        so="s61" if aa<2 else "s62"
        a(f"buffer_load_dwordx4 {r4(SL(32+t))}, v5, s[52:55], {so} offen offset:{(aa%2)*1280+cb*256}{wnt}")
        a("s_nop 0")
    a("s_branch L_qw")
    g.lab("L_c1")
    a("s_sub_u32 s60, s60, 48")
    a("s_cmp_ge_u32 s60, 40"); a("s_cselect_b32 s61, 1, 0"); a("s_mul_i32 s62, s61, 40"); a("s_sub_u32 s62, s60, s62")
    a("s_mul_i32 s63, s61, 327680"); a("s_lshl_b32 s74, s62, 6"); a("s_add_u32 s63, s63, s74"); a(f"s_add_u32 s63, s63, {Y_OFF}")
    a("s_lshl_b32 s78, s61, 13"); a(f"s_add_u32 s78, s78, {ST_OFF+16}")
    a("v_lshrrev_b32 v36, 2, v1"); a("v_and_b32 v37, 3, v1")
    a("v_mul_u32_u24 v45, 2560, v36"); a("v_lshl_add_u32 v45, v37, 4, v45")
    a("v_mul_u32_u24 v44, 5120, v36"); a("v_lshl_add_u32 v44, v37, 4, v44")
    a("s_mul_i32 s75, s61, 2560"); a("s_add_u32 s75, s75, s74"); a(f"s_add_u32 s75, s75, {F2_OFF}")
    a("v_and_b32 v38, 1, v36"); a("v_lshlrev_b32 v38, 1, v38"); a("v_bfe_u32 v39, v36, 1, 1"); a("v_or_b32 v38, v38, v39")
    a("v_lshl_add_u32 v38, v37, 2, v38"); a("v_lshlrev_b32 v38, 1, v38")
    a("s_mul_i32 s61, s61, 1280"); a("s_lshl_b32 s62, s62, 5"); a("s_add_u32 s61, s61, s62"); a("v_add_u32 v23, s61, v38")
    srd(48,4,2560)
    a("buffer_load_ushort v46, v23, s[48:51], 0 offen")
    a("v_cmp_gt_u32 vcc, 12, v36"); a("v_mov_b32 v39, 0x7ffffff0"); a("s_nop 0"); a("v_cndmask_b32 v22, v39, v44, vcc")
    a("s_add_u32 s79, s78, 4096")
    def chkloads():
        a("v_lshlrev_b32 v36, 10, v1"); a("v_lshlrev_b32 v38, 6, v1"); a("v_mov_b32 v39, 0x7ffffff0")
        a("v_cmp_gt_u32 vcc, 44, v1"); a(f"s_mov_b32 s61, {F1_OFF}"); a(f"s_mov_b32 s62, {F1_OFF+65536}"); a("v_cndmask_b32 v37, v39, v36, vcc")
        a("buffer_load_dword v10, v36, s[40:43], s61 offen sc1")
        a("buffer_load_dword v11, v37, s[40:43], s62 offen sc1")
        a("buffer_load_dword v12, v38, s[40:43], s78 offen sc1")
        a("buffer_load_dword v13, v38, s[40:43], s79 offen sc1")
    chkloads()
    a("s_branch L_vphase")
    g.lab("L_w3pre")
    prio(3)
    a("s_mov_b32 s80, 0")
    a("s_branch L_w3_chk1")
    g.lab("L_w3_chk")
    chkloads()
    g.lab("L_w3_chk1")
    a("s_waitcnt vmcnt(0)")
    allvalid([10,11,12,13],36)
    a("s_cbranch_scc1 L_w3_chk_ok")
    retry("L_w3_chk",16)
    g.lab("L_w3_chk_ok")
    a("s_mov_b32 s80, 0")
    SL2=lambda i: SL(vslots[i])
    g.lab("L_w3_poll")
    a("s_mov_b32 s62, s75")
    for i in range(7):
        vo="v44" if i<6 else "v22"
        a(f"buffer_load_dwordx4 {r4(SL2(i))}, {vo}, s[40:43], s62 offen sc1")
        if i<6: a("s_add_u32 s62, s62, 81920")
    a("s_waitcnt vmcnt(0)")
    allvalid([SL2(i)+k for i in range(7) for k in range(4)],36)
    a("s_cbranch_scc1 L_w3_ok")
    retry("L_w3_poll",16)
    g.lab("L_w3_ok")
    for i in range(1,7): pkadd(SL2(0),SL2(i))
    scatter_reduce(SL2(0),47)
    a("v_cvt_pk_bf16_f32 v47, v47, v47"); a("v_lshlrev_b32 v47, 16, v47"); a("v_lshlrev_b32 v46, 16, v46")
    stamp(6,3)
    a("s_branch L_bar2")

    g.lab("L_ln")
    prio(3)
    a("s_mov_b32 s61, 0xffff0000")
    a(f"s_waitcnt vmcnt({NPRE0})")
    stamp(3,2)
    U=SL(32)
    for k in range(10):
        a(f"v_lshlrev_b32 v{U+2*k}, 16, v{14+k}"); a(f"v_and_b32 v{U+2*k+1}, s61, v{14+k}")
    a(f"v_add_f32 v28, v{U}, v{U+1}"); a(f"v_add_f32 v29, v{U+2}, v{U+3}")
    for k in range(4,20,2):
        a(f"v_add_f32 v28, v28, v{U+k}"); a(f"v_add_f32 v29, v29, v{U+k+1}")
    a("v_add_f32 v28, v28, v29")
    def red32(v,t):
        for ctrl in ("quad_perm:[1,0,3,2]","quad_perm:[2,3,0,1]","row_half_mirror","row_mirror"): dpp("v_add_f32",v,ctrl)
        xrow("v_add_f32",v,t,steps=(16,))
    red32(28,29)
    a("s_mov_b32 s62, 0x3acccccd")
    a("v_mul_f32 v28, s62, v28")
    for k in range(20): a(f"v_sub_f32 v{U+20+k}, v{U+k}, v28")
    a(f"v_mul_f32 v30, v{U+20}, v{U+20}"); a(f"v_mul_f32 v31, v{U+21}, v{U+21}")
    for k in range(2,20,2):
        a(f"v_fmac_f32 v30, v{U+20+k}, v{U+20+k}"); a(f"v_fmac_f32 v31, v{U+21+k}, v{U+21+k}")
    a("v_add_f32 v30, v30, v31")
    red32(30,29)
    a("v_mul_f32 v30, s62, v30")
    a("v_cvt_pk_bf16_f32 v29, v28, v30"); a("v_lshlrev_b32 v28, 16, v29"); a("v_and_b32 v30, s61, v29")
    a("v_add_f32 v30, 0x3727c5ac, v30"); a("v_cvt_pk_bf16_f32 v30, v30, v30"); a("v_and_b32 v30, s61, v30")
    a("v_sqrt_f32 v30, v30"); a("s_nop 0"); a("v_cvt_pk_bf16_f32 v30, v30, v30"); a("v_and_b32 v30, s61, v30")
    a("v_rcp_f32 v30, v30")
    for k in range(20): a(f"v_sub_f32 v{U+k}, v{U+k}, v28")
    for k in range(10): a(f"v_cvt_pk_bf16_f32 v{14+k}, v{U+2*k}, v{U+2*k+1}")
    for k in range(10):
        a(f"v_lshlrev_b32 v{U+2*k}, 16, v{14+k}"); a(f"v_and_b32 v{U+2*k+1}, s61, v{14+k}")
    for k in range(20): a(f"v_mul_f32 v{U+k}, v{U+k}, v30")
    for k in range(10): a(f"v_cvt_pk_bf16_f32 v{14+k}, v{U+2*k}, v{U+2*k+1}")
    for k in range(5): a(f"ds_write_b64 v12, v[{14+2*k}:{15+2*k}] offset:{LX+256*k}")
    stamp(4,2)
    prio(2)
    a("s_branch L_bar0")

    g.lab("L_unit2")
    prio(3)
    stamp(3,2)
    a("v_bfe_u32 v36, v1, 3, 1"); a("v_mul_u32_u24 v36, 1280, v36"); a("v_mad_u32_u24 v36, v3, 20, v36"); a("s_lshl_b32 s61, s68, 1"); a("v_add_u32 v36, s61, v36")
    for k in range(5): a(f"ds_read_b32 v{14+k}, v36 offset:{LX+4*k}")
    a("s_mov_b32 s61, 0x01000100"); a("s_mov_b32 s62, 0x03020302")
    a("s_cmp_lg_u32 s56, 4"); a("s_cbranch_scc1 L_u2a"); a("s_bitcmp1_b32 s2, 0"); a("s_cbranch_scc1 L_u2a")
    a(f"s_waitcnt vmcnt({NPRE0})")
    a("s_mul_i32 s70, s66, 5120"); a(f"s_add_u32 s70, s70, {F2_OFF}"); a("s_add_u32 s71, s70, 4096")
    for k in range(4): a(f"buffer_store_dwordx4 v[24:27], v2, s[40:43], s70 offen offset:{1024*k} sc1")
    a("buffer_store_dwordx4 v[24:27], v2, s[40:43], s71 offen sc1")
    a("s_branch L_u2b")
    g.lab("L_u2a")
    a(f"s_waitcnt vmcnt({NPRE0})")
    g.lab("L_u2b")
    a("s_waitcnt lgkmcnt(0)")
    def buildX(i):
        A=28+4*(i%2)
        a(f"v_perm_b32 v36, v{14+i//2}, v{14+i//2}, s{61+i%2}")
        for r in range(4): a(f"v_and_b32 v{A+r}, v36, v{6+r}")
    buildX(0)
    for i in range(10):
        if i<9: buildX(i+1)
        else: a("s_nop 0")
        C="0" if i==0 else "v[40:43]"
        a(f"v_mfma_f32_16x16x32_bf16 v[40:43], {r4(28+4*(i%2))}, {r4(SL(32+i))}, {C}")
    a("s_cmp_eq_u32 s56, 4"); a("s_cbranch_scc1 L_u2c")
    a("s_nop 5")
    for k in range(4): a(f"v_min_u32 v{40+k}, -2, v{40+k}")
    a(f"ds_write_b128 v13, v[40:43] offset:{LU}")
    prio(2)
    a("s_branch L_nobar0")
    g.lab("L_u2c")
    a(f"v_min_u32 v17, {NROOT-1}, v1"); a("v_lshlrev_b32 v17, 2, v17")
    a("buffer_load_dword v16, v17, s[44:47], 0 offen sc1")
    a("v_lshrrev_b32 v12, 1, v3"); a("v_lshlrev_b32 v12, 9, v12"); a("v_lshl_add_u32 v12, v4, 5, v12"); a("v_and_b32 v13, 1, v3"); a("v_lshl_add_u32 v12, v13, 4, v12")
    a("s_mov_b32 s80, 0")
    g.lab("L_u2w")
    for k in range(3): a(f"ds_read_b128 {r4(28+4*k)}, v2 offset:{LU+1024*(k+1)}")
    a("s_waitcnt lgkmcnt(0)")
    allvalid(list(range(28,40)),44)
    a("s_cbranch_scc1 L_u2ok")
    a("s_sleep 1"); a("s_add_u32 s80, s80, 1"); a("s_cmp_lt_u32 s80, 0x100000"); a("s_cbranch_scc1 L_u2w")
    g.lab("L_u2ok")
    pkadd(40,28); pkadd(32,36); pkadd(40,32)
    for k in range(4): a(f"v_min_u32 v{40+k}, -2, v{40+k}")
    stamp(4,2)
    a("s_waitcnt vmcnt(0)")
    rootpoll("B",first_issued=True)
    stamp(5,2)
    a("buffer_store_dwordx4 v[40:43], v12, s[40:43], s75 offen sc1")
    prio(2)
    a("s_branch L_nobar0")

    g.lab("L_role")
    prio(3)
    stamp(3,2)
    a(f"s_waitcnt vmcnt({32-RPOS})")
    rootpoll("A",first_issued=True)
    stamp(5,2)
    g.lab("L_w0_poll0")
    a("v_lshlrev_b32 v18, 3, v1"); a("v_lshlrev_b32 v19, 2, v1")
    a("s_lshl_b32 s61, s57, 12"); a("s_lshl_b32 s62, s58, 9"); a("s_add_u32 s61, s61, s62"); a(f"s_add_u32 s61, s61, {QP_OFF}")
    a("s_mov_b32 s80, 0")
    g.lab("L_w0_poll")
    for k in range(4): a(f"buffer_load_dwordx2 v[{28+2*k}:{29+2*k}], v18, s[40:43], s61 offen offset:{1024*k} sc1")
    a("s_waitcnt vmcnt(0)")
    allvalid(list(range(28,36)),16)
    a("s_cbranch_scc1 L_w0_ok")
    retry("L_w0_poll",SLEEP2)
    g.lab("L_w0_ok")
    stamp(6,2)
    a("v_pk_add_f32 v[28:29], v[28:29], v[30:31]"); a("v_pk_add_f32 v[32:33], v[32:33], v[34:35]"); a("v_pk_add_f32 v[28:29], v[28:29], v[32:33]")
    a("v_cvt_pk_bf16_f32 v28, v28, v29")
    a("v_min_u32 v28, -2, v28")
    a(f"ds_write_b32 v19, v28 offset:{LQ}")
    a("s_branch L_extras")
    g.lab("L_ffn2")
    T0=SL(9)
    GA=T0; GB=T0+4; GG=T0+8; GU=T0+12; TA=T0+16; TB=T0+17
    a("s_and_b32 s63, s60, 3"); a("s_lshr_b32 s74, s60, 2")
    a(f"v_and_b32 v{TA}, 3, v1"); a(f"v_lshlrev_b32 v{TA}, 10, v{TA}"); a(f"v_bfe_u32 v{TB}, v1, 2, 2"); a(f"v_lshl_add_u32 v{TA}, v{TB}, 8, v{TA}"); a(f"v_lshl_add_u32 v{TA}, v3, 4, v{TA}")
    a("s_lshl_b32 s61, s74, 12"); a("s_lshl_b32 s62, s63, 6"); a("s_add_u32 s61, s61, s62"); a(f"s_add_u32 s61, s61, {F1_OFF}")
    a("s_mov_b32 s80, 0")
    g.lab("L_w1_poll")
    a(f"buffer_load_dwordx4 {r4(GA)}, v{TA}, s[40:43], s61 offen sc1")
    a("s_waitcnt vmcnt(0)")
    allvalid([GA,GA+1,GA+2,GA+3],TB)
    a("s_cbranch_scc1 L_w1_ok")
    retry("L_w1_poll",SLEEP2)
    g.lab("L_w1_ok")
    stamp(6,2)
    a(f"v_and_b32 v{TB}, 4, v1"); a(f"v_cmp_eq_u32 vcc, 0, v{TB}")
    a("s_mov_b32 s61, 0xffff0000")
    for ctrl in ("quad_perm:[1,0,3,2]","quad_perm:[2,3,0,1]"):
        for k in range(4): a(f"v_add_f32_dpp v{GA+k}, v{GA+k}, v{GA+k} {ctrl} {DPPF}")
    for k in range(4): a(f"v_mov_b32_dpp v{GB+k}, v{GA+k} row_half_mirror {DPPF}")
    for k in range(4):
        a(f"v_cndmask_b32 v{GG+k}, v{GB+k}, v{GA+k}, vcc"); a(f"v_cndmask_b32 v{GU+k}, v{GA+k}, v{GB+k}, vcc")
    a("s_mov_b32 s62, 0x3d372713")
    a("s_mov_b32 s74, 0xc0135761")
    for k in range(4):
        gk=GG+k; uk=GU+k
        a(f"v_cvt_pk_bf16_f32 v{TA}, v{gk}, v{uk}"); a(f"v_lshlrev_b32 v{gk}, 16, v{TA}"); a(f"v_and_b32 v{uk}, s61, v{TA}")
        a(f"v_mul_f32 v{TB}, v{gk}, v{gk}"); a(f"v_mul_f32 v{TB}, s62, v{TB}"); a(f"v_fma_f32 v{TB}, v{TB}, v{gk}, v{gk}")
        a(f"v_mul_f32 v{TB}, s74, v{TB}"); a(f"v_exp_f32 v{TB}, v{TB}"); a("s_nop 0"); a(f"v_add_f32 v{TB}, 1.0, v{TB}"); a(f"v_rcp_f32 v{TB}, v{TB}"); a("s_nop 0")
        a(f"v_mul_f32 v{TB}, v{gk}, v{TB}"); a(f"v_cvt_pk_bf16_f32 v{TB}, v{TB}, v{TB}"); a(f"v_and_b32 v{TB}, s61, v{TB}")
        a(f"v_mul_f32 v{TB}, v{TB}, v{uk}"); a(f"v_cvt_pk_bf16_f32 v{TB}, v{TB}, v{TB}")
        for r in range(4): a(f"v_and_b32 v{SL(5+k)+r}, v{TB}, v{6+r}")
    a("s_nop 1")
    for aa in range(4):
        for cb in range(5):
            C="0" if aa==0 else r4(SL(cb))
            a(f"v_mfma_f32_16x16x32_bf16 {r4(SL(cb))}, {r4(SL(5+aa))}, {r4(SL(32+aa*5+cb))}, {C}")
    a(f"v_lshrrev_b32 v{TA}, 1, v3"); a(f"v_mul_u32_u24 v{TA}, 2560, v{TA}"); a(f"v_lshl_add_u32 v{TA}, v4, 5, v{TA}"); a(f"v_and_b32 v{TB}, 1, v3"); a(f"v_lshl_add_u32 v{TA}, v{TB}, 4, v{TA}")
    a("s_mul_i32 s61, s60, 5120"); a(f"s_add_u32 s61, s61, {F2_OFF}")
    a("s_nop 4")
    for k in range(20): a(f"v_min_u32 v{SL(0)+k}, -2, v{SL(0)+k}")
    for cb in range(5): a(f"buffer_store_dwordx4 {r4(SL(cb))}, v{TA}, s[40:43], s61 offen offset:{512*cb} sc1")
    a("s_mov_b32 s3, 4")
    prio(1)
    a("s_branch L_exl")

    o.append('.section .rodata,"a"'); o.append(".p2align 6"); o.append(f".amdhsa_kernel {NAME}")
    for x in ["next_free_vgpr 256","next_free_sgpr 102","accum_offset 256","group_segment_fixed_size 0","kernarg_size 96","user_sgpr_count 2","user_sgpr_kernarg_segment_ptr 1","system_sgpr_workgroup_id_x 1","float_denorm_mode_32 3"]:
        o.append("  .amdhsa_"+x)
    o.append(".end_amdhsa_kernel")
    return "\n".join(o)+"\n"

if __name__=="__main__":
    import argparse
    ap=argparse.ArgumentParser(); ap.add_argument("out"); ap.add_argument("kw",nargs="*")
    ar=ap.parse_args()
    kw={}
    for x in ar.kw:
        k,v=x.split("="); kw[k]=int(v) if v.lstrip("-").isdigit() else v
    open(ar.out,"w").write(gen(**kw))
```

```python
import sys
NAME="parallel_sum__gqa_block_cached__geglu_ffn__decode_kernel"
HDR=open("parallel_sum__gqa_block_cached__geglu_ffn__decode.s.ref").read().split("; Override launch")[0]

RU=0; RST=4096; RFL=4608; RF2=5120; RY=10240
NFREE=20
STAMP_OFF=0x8000000
LQ=0; LN_=256; LF=320; LO=512; LO_STR=544; LY=LO+8*LO_STR; LY_STR=2560; LX=LY+8*LY_STR; LU=LX+4096; LH=LU+4096; LS=LH+256; LC=LS+64; LDS_BYTES=LC+64
LOG2E=0x3fb8aa3b
SCALE=0x3db504f3
DPPF="row_mask:0xf bank_mask:0xf"
T=[16,17,18,19]
SN=15

class G:
    def __init__(s): s.o=[]; s.vm=[]
    def a(s,x): s.o.append("    "+x)
    def lab(s,x): s.o.append(x+":")
    def vmem(s,tag,x): s.a(x); s.vm.append(tag)
    def vreset(s): s.vm=[]
    def wait(s,tag):
        i=len(s.vm)-1-s.vm[::-1].index(tag)
        n=len(s.vm)-1-i
        assert n<=63
        s.a(f"s_waitcnt vmcnt({n})")

def mix(A,B):
    out=[]; ia=ib=0
    while ia<len(A) or ib<len(B):
        if ib>=len(B) or (ia<len(A) and ia*len(B)<=ib*len(A)): out.append(A[ia]); ia+=1
        else: out.append(B[ib]); ib+=1
    return out

def gen(KNT=1, WNT=1, ONT=0, stamps=0, NPRE0=6, NEX=12, SLEEP1=16, SLEEP2=8, SLEEPF=4, PAD=0, OLAST=0, RPOS=20, DBG=0, FW=7, PADAT=0, FIN=2, FTH=8, SLEEPG=24, YW=0, ROT=0, PL=0, PS=0, FPOS=3, FDEL=0, FSL=1, HELP=0, OSC=0, FAST=1, CW=0, RBSH=3, RSTR=32256, ASYM=1, STC=1, F7=1, F1E=0, YT=0, PIPE=1):
    WS_SIZE=64*RSTR
    g=G(); a=g.a
    knt=" nt" if KNT else ""; wnt=" nt" if WNT else ""; ont=" nt" if ONT else ""
    def stamp(k,mode=1):
        if PAD and PADAT==k+10*(mode-1) and PADAT: a("s_memrealtime s[100:101]"); a("s_waitcnt lgkmcnt(0)")
        if stamps==mode or (stamps and k in (0,1,2,7) and mode==1) or (stamps==3 and k in (5,6) and mode==1): a(f"s_memrealtime s[{84+2*k}:{85+2*k}]")
    def prio(p): a(f"s_setprio {p}")
    def xrow(op,v,t,steps=(16,32)):
        for st in steps:
            a(f"v_mov_b32 v{t}, v{v}"); a("s_nop 1"); a(f"v_permlane{st}_swap_b32 v{v}, v{t}"); a(f"{op} v{v}, v{v}, v{t}")
    def dpp(op,v,ctrl,nop=True):
        if nop: a("s_nop 1")
        a(f"{op}_dpp v{v}, v{v}, v{v} {ctrl} {DPPF}")
    def srd(d,p,size):
        a(f"s_mov_b32 s{d}, s{p}"); a(f"s_mov_b32 s{d+1}, s{p+1}"); a(f"s_mov_b32 s{d+2}, {size:#x}"); a(f"s_mov_b32 s{d+3}, 0x20000")
    def ldsvalid(regs,t):
        if len(regs)==2: a(f"v_max_u32 v{t}, v{regs[0]}, v{regs[1]}"); k=2
        else: a(f"v_max3_u32 v{t}, v{regs[0]}, v{regs[1]}, v{regs[2]}"); k=3
        while k+1<len(regs):
            a(f"v_max3_u32 v{t}, v{t}, v{regs[k]}, v{regs[k+1]}"); k+=2
        if k<len(regs): a(f"v_max_u32 v{t}, v{t}, v{regs[k]}")
        a(f"v_cmp_eq_u32 vcc, -1, v{t}")
        a("s_cmp_eq_u64 vcc, 0")
    def untag(bases,t):
        regs=[]
        for b in bases:
            for k in range(4): a(f"v_xor_b32 v{b+k}, s{T[k]}, v{b+k}"); regs.append(b+k)
        a(f"v_or3_b32 v{t}, v{regs[0]}, v{regs[1]}, v{regs[2]}"); k=3
        while k+1<len(regs):
            a(f"v_or3_b32 v{t}, v{t}, v{regs[k]}, v{regs[k+1]}"); k+=2
        if k<len(regs): a(f"v_or_b32 v{t}, v{t}, v{regs[k]}")
        a(f"v_and_b32 v{t}, 15, v{t}")
        a(f"v_cmp_ne_u32 vcc, 0, v{t}")
        a("s_cmp_eq_u64 vcc, 0")
    def tag(b):
        for k in range(4): a(f"v_and_or_b32 v{b+k}, v{b+k}, -16, s{T[k]}")
    def settags(v):
        a(f"v_readfirstlane_b32 s{SN}, v{v}")
        a("s_nop 0")
        for k in range(4): a(f"s_bfe_u32 s{T[k]}, s{SN}, {(4<<16)|(4*k):#x}")
    def retry(lab,sl,lim=0x10000,lds=False):
        if DBG&1 and not lds: return
        a(f"s_sleep {sl}"); a("s_add_u32 s80, s80, 1"); a(f"s_cmp_lt_u32 s80, {lim:#x}"); a(f"s_cbranch_scc1 {lab}")
    def rootpoll(tagn,v):
        a("s_mov_b32 s80, 0"); a("v_mov_b32 v21, 0")
        a(f"s_branch L_rp_chk{tagn}")
        g.lab(f"L_rp{tagn}")
        a(f"buffer_load_dword v{v}, v21, s[44:47], 0 offen sc1")
        a("s_waitcnt vmcnt(0)")
        g.lab(f"L_rp_chk{tagn}")
        a(f"v_cmp_eq_u32 vcc, 0, v{v}"); a("s_cmp_eq_u64 vcc, 0"); a(f"s_cbranch_scc1 L_rp_ok{tagn}")
        retry(f"L_rp{tagn}",SLEEP1)
        g.lab(f"L_rp_ok{tagn}")
        settags(v)
    def masks(t0,t1):
        a(f"v_and_b32 v{t0}, 1, v1"); a(f"v_lshlrev_b32 v{t0}, 4, v{t0}"); a(f"v_mov_b32 v{t1}, 0xffff"); a(f"v_lshlrev_b32 v{t0}, v{t0}, v{t1}")
        a(f"v_bfe_u32 v{t1}, v1, 1, 2")
        for r in range(4):
            a(f"v_cmp_eq_u32 vcc, {r}, v{t1}"); a("s_nop 1"); a(f"v_cndmask_b32 v{6+r}, 0, v{t0}, vcc")
    def pkadd(d,s):
        for k in range(2): a(f"v_pk_add_f32 v[{d+2*k}:{d+2*k+1}], v[{d+2*k}:{d+2*k+1}], v[{s+2*k}:{s+2*k+1}]")
    def scatter_reduce(b,dst,t0,t1):
        a("s_nop 1")
        a(f"v_add_f32_dpp v{t0}, v{b}, v{b} row_ror:8 row_mask:0xf bank_mask:0x3")
        a(f"v_add_f32_dpp v{t0}, v{b+1}, v{b+1} row_ror:8 row_mask:0xf bank_mask:0xc")
        a(f"v_add_f32_dpp v{t1}, v{b+2}, v{b+2} row_ror:8 row_mask:0xf bank_mask:0x3")
        a(f"v_add_f32_dpp v{t1}, v{b+3}, v{b+3} row_ror:8 row_mask:0xf bank_mask:0xc")
        a(f"v_add_f32_dpp v{dst}, v{t0}, v{t0} row_shl:4 row_mask:0xf bank_mask:0x5")
        a("s_nop 0")
        a(f"v_add_f32_dpp v{dst}, v{t1}, v{t1} row_shr:4 row_mask:0xf bank_mask:0xa")
        xrow("v_add_f32",dst,t0)
    SL=lambda i: 48+4*i
    def r4(b): return f"v[{b}:{b+3}]"
    o=g.o
    o.append(HDR.rstrip("\n"))
    o.append(f"; @launch grid=(256,1,1) block=(512,1,1) lds={LDS_BYTES}")
    o.append('.amdgcn_target "amdgcn-amd-amdhsa--gfx950"'); o.append(".text"); o.append(f".globl {NAME}"); o.append(".p2align 8"); o.append(f".type {NAME},@function"); o.append(f"{NAME}:")
    a("s_cmp_ge_u32 s2, 256"); a("s_cbranch_scc1 L_end")
    a("s_load_dwordx16 s[4:19], s[0:1], 0"); a("s_load_dwordx8 s[20:27], s[0:1], 64")
    stamp(0)
    if PAD: a("s_memrealtime s[100:101]")
    a("v_lshrrev_b32 v3, 6, v0"); a("v_and_b32 v1, 63, v0"); a("v_readfirstlane_b32 s56, v3"); a("v_lshlrev_b32 v2, 4, v1")
    a("s_and_b32 s57, s2, 7"); a("s_lshl_b32 s57, s57, 2"); a("s_lshr_b32 s61, s2, 3"); a("s_and_b32 s62, s61, 3"); a("s_add_u32 s57, s57, s62")
    a("s_lshr_b32 s58, s2, 7")
    a("s_lshr_b32 s59, s2, 5"); a("s_and_b32 s59, s59, 3")
    a("s_lshl_b32 s81, s58, 5"); a("s_add_u32 s81, s81, s57")
    a("s_lshl_b32 s64, s81, 20"); a("s_lshl_b32 s62, s59, 18"); a("s_add_u32 s64, s64, s62")
    a("s_lshr_b32 s62, s56, 2"); a("s_lshl_b32 s62, s62, 17"); a("s_add_u32 s64, s64, s62")
    a("s_and_b32 s69, s56, 3"); a("s_lshl_b32 s62, s69, 10"); a("s_add_u32 s64, s64, s62")
    if ROT:
        a("s_mov_b32 s100, s64")
        if ROT==1: a("s_lshr_b32 s62, s2, 3")
        elif ROT==2: a("s_mov_b32 s62, s2")
        elif ROT==3: a("s_mul_i32 s62, s2, 11")
        elif ROT==4: a("s_lshr_b32 s62, s2, 3"); a("s_lshl_b32 s62, s62, 2")
        elif ROT==5: a("s_mov_b32 s62, s57")
        elif ROT==6: a("s_and_b32 s62, s57, 30"); a("s_add_u32 s62, s62, s58")
        elif ROT==7: a("s_lshl_b32 s62, s2, 2")
        elif ROT==8: a("s_lshl_b32 s62, s58, 4"); a("s_xor_b32 s62, s62, s2")
        elif ROT==9: a("s_and_b32 s62, s2, 7")
        elif ROT==10: a("s_and_b32 s62, s2, 24")
        elif ROT==11: a("s_add_u32 s62, s2, s59")
        elif ROT==12: a("s_lshl_b32 s62, s59, 3"); a("s_add_u32 s62, s62, s2")
        a("s_and_b32 s62, s62, 31"); a("s_lshl_b32 s62, s62, 12"); a("s_or_b32 s64, s64, s62")
    a("s_mov_b32 s65, s64")
    a("s_mov_b32 s82, 0")
    if FAST:
        a("s_mov_b32 s30, 0x4000000"); a("s_mov_b32 s31, 0x20000")
        a("s_waitcnt lgkmcnt(0)")
        a("s_mov_b32 s28, s6"); a("s_mov_b32 s29, s7")
        for i in range(NPRE0):
            a(f"buffer_load_dwordx4 {r4(SL(i))}, v2, s[28:31], s64 offen{knt}"); a("s_add_u32 s64, s64, 4096")
    if CW:
        a(f"s_cmp_ge_u32 s2, {CW}"); a("s_cbranch_scc1 L_nocw"); a("s_cmp_ge_u32 s56, 3"); a("s_cbranch_scc1 L_nocw")
        a("s_getpc_b64 s[62:63]")
        g.lab("L_pc")
        a("v_lshlrev_b32 v36, 7, v0"); a("v_min_u32 v36, L_code_end-L_pc-4, v36")
        a("global_load_dword v47, v36, s[62:63]")
        a("s_lshr_b32 s63, s2, 1"); a("s_and_b32 s63, s63, 3")
        g.lab("L_nocw")
    a("v_lshrrev_b32 v3, 4, v1"); a("v_and_b32 v4, 15, v1")
    if RBSH==3:
        a("s_bfe_u32 s63, s2, 0x20003"); a("s_lshr_b32 s60, s2, 5"); a("s_lshl_b32 s60, s60, 3")
        if ASYM: a("s_bfe_u32 s62, s2, 0x20001"); a("s_or_b32 s60, s60, s62"); a("s_and_b32 s62, s2, 1"); a("s_lshl_b32 s62, s62, 2"); a("s_or_b32 s60, s60, s62")
        else: a("s_and_b32 s62, s2, 7"); a("s_or_b32 s60, s60, s62")
    else:
        a("s_bfe_u32 s63, s2, 0x20005"); a("s_lshr_b32 s60, s2, 7"); a("s_lshl_b32 s60, s60, 5"); a("s_and_b32 s62, s2, 31"); a("s_or_b32 s60, s60, s62")
    if F7:
        a("s_mov_b32 s62, s60")
        for x,y in ((39,59),(47,60),(55,61)):
            a(f"s_cmp_eq_u32 s62, {x}"); a(f"s_cselect_b32 s60, {y}, s60"); a(f"s_cmp_eq_u32 s62, {y}"); a(f"s_cselect_b32 s60, {x}, s60")
    a("s_cmp_lt_u32 s60, 32")
    a("s_cselect_b32 s14, 1, 0"); a("s_mov_b32 s79, 0"); a("s_mov_b32 s78, 3456"); a("s_cselect_b32 s78, 8192, s78"); a("s_cselect_b32 s76, 8, 7"); a("s_cselect_b32 s77, 15, 7")
    a("s_and_b32 s74, s60, 31")
    a("s_sub_u32 s66, 58, s60")
    a("s_cselect_b32 s67, 0, %d"%(0 if DBG&2 else 1))
    a("s_lshl_b32 s71, s60, 2"); a("s_add_u32 s71, s71, s63")
    a(f"s_mul_i32 s75, s60, {RSTR}"); a("s_lshl_b32 s62, s63, 10"); a("s_add_u32 s75, s75, s62")
    if ASYM: a("s_mov_b32 s70, 10"); a("s_mov_b32 s68, 0")
    else: a("s_cmp_lt_u32 s63, 2"); a("s_cselect_b32 s70, 8, 12"); a("s_cselect_b32 s68, 0, -128")
    a("s_lshl_b32 s62, s63, 2"); a("s_add_u32 s62, s62, s69"); a("s_mul_i32 s62, s62, s70"); a("s_lshl_b32 s62, s62, 2"); a("s_add_u32 s68, s68, s62")
    a("v_mov_b32 v37, s68"); a("v_mad_u32_u24 v22, v3, s70, v37"); a("v_mul_lo_u32 v36, v22, s78")
    a("s_lshl_b32 s62, s74, s76"); a("v_and_b32 v37, s77, v1"); a("v_lshl_add_u32 v36, v37, 4, v36"); a("v_add_u32 v36, s62, v36"); a("v_mov_b32 v37, 0")
    a("v_and_b32 v38, 8, v1"); a("v_cmp_eq_u32 vcc, 0, v38")
    if ASYM:
        a("s_lshr_b32 s83, s2, 1")
        a("s_cmp_lt_u32 s83, 80"); a("s_cselect_b32 s61, %d, 0"%(0 if DBG&4 else 5))
        a("s_sub_u32 s71, s71, 240"); a("s_cmp_lt_u32 s71, 7"); a("s_cselect_b32 s61, %d, s61"%(0 if DBG&34 else 3)); a("s_cselect_b32 s62, s71, 0"); a("s_cselect_b32 s83, 128, s83"); a("s_add_u32 s83, s83, s62")
        a("s_bitcmp0_b32 s2, 0"); a("s_cselect_b32 s61, %d, s61"%(0 if DBG&34 else 3))
    else:
        a("s_lshl_b32 s83, s60, 1"); a("s_and_b32 s61, s63, 1"); a("s_add_u32 s83, s83, s61")
        a("s_cmp_lt_u32 s83, 80"); a("s_cselect_b32 s61, %d, 0"%(0 if DBG&4 else 5))
        a("s_cmp_lt_u32 s63, 2"); a("s_cselect_b32 s61, %d, s61"%(0 if DBG&34 else 3))
        a("s_sub_u32 s71, s71, 118")
        a("s_cmp_lt_u32 s71, 135"); a("s_cselect_b32 s62, %d, 0"%(0 if DBG&34 else 3))
        a("s_cmp_ge_i32 s66, 0"); a("s_cselect_b32 s61, s61, s62"); a("s_cselect_b32 s83, s83, s71")
    a("s_cmp_eq_u32 s61, 3"); a(f"s_cselect_b32 s62, {FW}, 3")
    a("s_cmp_eq_u32 s56, s62"); a("s_cselect_b32 s3, s61, 0")
    if HELP:
        a("s_cmp_eq_u32 s61, 5"); a("s_cselect_b32 s62, 4, 99"); a("s_cmp_eq_u32 s56, s62"); a("s_cselect_b32 s3, 6, s3")
    a("s_cmp_eq_u32 s56, 0"); a("s_cselect_b32 s3, 1, s3")
    a("s_cmp_eq_u32 s56, 2"); a("s_cselect_b32 s3, 2, s3")
    a("s_cmp_ge_u32 s56, 4"); a("s_cselect_b32 s67, s67, 0")
    for k in range(4): a(f"v_mov_b32 v{40+k}, -1")
    if not FAST:
        a("s_waitcnt lgkmcnt(0)")
        srd(28,6,64<<20)
    srd(40,26,WS_SIZE)
    a(f"s_mov_b32 s101, {63*RSTR}")
    a("s_cmp_eq_u32 s67, 1"); a("s_cbranch_scc0 L_pref")
    prio(3)
    a("v_lshrrev_b32 v38, 5, v1"); a("v_mul_u32_u24 v38, 1280, v38"); a("v_and_b32 v39, 31, v1"); a("v_lshl_add_u32 v12, v39, 3, v38")
    a("s_cmp_lg_u32 s56, 4"); a("s_cbranch_scc1 L_noe")
    a(f"buffer_load_dword v20, v37, s[40:43], s101 offen sc1")
    g.lab("L_noe")
    a("s_cmp_lg_u32 s56, 5"); a("s_cbranch_scc1 L_nox")
    srd(48,4,2560)
    for k in range(5): a(f"buffer_load_dwordx2 v[{24+2*k}:{25+2*k}], v12, s[48:51], 0 offen offset:{256*k}")
    g.lab("L_nox")
    a("s_cmp_eq_u32 s14, 1"); a("s_cselect_b32 s61, s10, s16"); a("s_cselect_b32 s62, s11, s17"); a("s_cselect_b32 s72, s10, s18"); a("s_cselect_b32 s73, s11, s19")
    a("v_mov_b32 v38, s72"); a("v_mov_b32 v39, s61"); a("v_cndmask_b32 v10, v38, v39, vcc")
    a("v_mov_b32 v38, s73"); a("v_mov_b32 v39, s62"); a("v_cndmask_b32 v11, v38, v39, vcc")
    a("v_lshl_add_u64 v[10:11], v[36:37], 0, v[10:11]")
    NU=10 if ASYM else 12
    for i in range(NU):
        if i==8 and not ASYM: a("s_cmp_eq_u32 s70, 8"); a("s_cbranch_scc1 L_w8")
        a(f"global_load_dwordx4 {r4(SL(32+i))}, v[10:11], off{wnt}")
        if i<NU-1: a("v_lshl_add_u64 v[10:11], v[10:11], 0, s[78:79]")
    g.lab("L_w8")
    a("s_lshl_b32 s61, s69, 10"); a("v_add_u32 v13, s61, v2"); a(f"ds_write_b128 v13, v[40:43] offset:{LU}")
    a(f"ds_write_b128 v13, v[40:43] offset:{LX}")
    a("s_waitcnt lgkmcnt(0)")
    a("s_barrier")
    a("s_mov_b32 s82, 1")
    a("s_branch L_unit2")
    g.lab("L_pref")
    prio(2)
    g.vreset()
    def kvload(kind,i,slot):
        srdn="s[28:31]" if kind=="K" else "s[32:35]"
        p=64 if kind=="K" else 65
        g.vmem((kind,i), f"buffer_load_dwordx4 {r4(SL(slot))}, v2, {srdn}, s{p} offen{knt}")
        a(f"s_add_u32 s{p}, s{p}, 4096")
        if ROT: a(f"s_and_b32 s{p}, s{p}, 0x1f000"); a(f"s_or_b32 s{p}, s{p}, s100")
    Vs=[("V",i) for i in range(32)]; Os=[("O",i) for i in range(20)]
    R=mix(Vs,Os[:20-OLAST])+Os[20-OLAST:]
    slot_of={}
    for i in range(32): slot_of[("K",i)]=i
    for k,t in enumerate(R): slot_of[t]=(32+k) if k<20 else k-20
    def sload(t):
        k=slot_of[t]
        if t[0] in "KV": kvload(t[0],t[1],k)
        elif DBG&8 and t[1]%8!=0: pass
        elif DBG&16: pass
        else:
            aa,cb=divmod(t[1],5)
            so="s72" if aa<2 else "s73"
            g.vmem(t, f"buffer_load_dwordx4 {r4(SL(k))}, v5, s[36:39], {so} offen offset:{(aa%2)*1280+cb*256}{ont}")
            a("s_nop 0")
    for i in range(32):
        if i==NPRE0:
            a("s_bitcmp1_b32 s82, 0"); a("s_cbranch_scc1 L_nobar0")
            a("v_mov_b32 v37, -1"); a("v_lshlrev_b32 v36, 2, v1"); a(f"ds_write_b32 v36, v37 offset:{LQ}"); a(f"ds_write_b32 v36, v37 offset:{LN_}")
            if STC: a("v_mov_b32 v36, 0"); a(f"ds_write_b32 v36, v36 offset:{LC}")
            a("s_waitcnt lgkmcnt(0)")
            a("s_barrier")
            masks(36,37)
            g.lab("L_nobar0")
        if i==RPOS:
            a("s_cmp_lg_u32 s3, 1"); a("s_cbranch_scc1 L_norp")
            a("v_mov_b32 v21, 0")
            a("s_cmp_ge_i32 s66, 0"); a("s_cbranch_scc1 L_norp")
            a(f"buffer_load_dword v20, v21, s[40:43], s101 offen sc1")
            g.lab("L_norp")
        if FAST and i<NPRE0: g.vm.append(("K",i))
        else: sload(("K",i))
    a("s_cmp_eq_u32 s3, 1"); a("s_cbranch_scc1 L_poller")
    g.lab("L_extras")
    prio(1)
    a("v_mov_b32 v45, 0"); a("v_mov_b32 v23, 0"); a("v_mov_b32 v44, 0"); a("v_mov_b32 v22, 0")
    srd(32,8,64<<20); srd(36,12,4096*640*2)
    a("v_mul_u32_u24 v5, 5120, v3"); a("v_lshl_add_u32 v5, v4, 4, v5")
    a("s_lshl_b32 s72, s57, 7"); a("s_lshl_b32 s62, s56, 4"); a("s_add_u32 s72, s72, s62"); a("s_mul_i32 s72, s72, 1280"); a("s_add_u32 s73, s72, 2560")
    if DBG&8:
        a("s_lshl_b32 s72, s2, 3"); a("s_add_u32 s72, s72, s56"); a("s_mul_i32 s72, s72, 2560"); a("s_add_u32 s73, s72, 1024"); a("v_mov_b32 v5, v2")
    a("s_cmp_eq_u32 s3, 3"); a("s_cbranch_scc1 L_wdown")
    g.lab("L_exl")
    for t in R[:NEX]: sload(t)
    a("s_cmp_eq_u32 s3, 4"); a("s_cbranch_scc1 L_rest")
    g.lab("L_qw")
    stamp(1)
    a(f"v_lshlrev_b32 v36, 4, v4")
    a("s_mov_b32 s80, 0")
    g.lab("L_qwait")
    a(f"ds_read_b128 v[10:13], v36 offset:{LQ}")
    a(f"ds_read_b32 v40, v45 offset:{LN_}")
    a("s_waitcnt lgkmcnt(0)")
    ldsvalid([10,11,12,13],37)
    a("s_cbranch_scc1 L_qok")
    retry("L_qwait",2,0x100000,lds=True)
    g.lab("L_qok")
    stamp(2)
    prio(3)
    settags(40)
    a("s_mov_b32 s74, 0x%x"%SCALE); a("s_mov_b32 s75, 0xffff0000")
    P=28; TT=36
    for d in range(4):
        g.wait(("K",8*d+7))
        for j in range(4):
            for t in range(8):
                src2="0" if j==0 else f"v{P+t}"
                a(f"v_dot2_f32_bf16 v{P+t}, v{SL(8*d+t)+j}, v{10+j}, {src2}")
        for h in range(2):
            b=P+4*h
            a(f"v_add_f32_dpp v{TT+2*h}, v{b}, v{b} row_ror:8 row_mask:0xf bank_mask:0x3")
            a(f"v_add_f32_dpp v{TT+2*h}, v{b+1}, v{b+1} row_ror:8 row_mask:0xf bank_mask:0xc")
            a(f"v_add_f32_dpp v{TT+2*h+1}, v{b+2}, v{b+2} row_ror:8 row_mask:0xf bank_mask:0x3")
            a(f"v_add_f32_dpp v{TT+2*h+1}, v{b+3}, v{b+3} row_ror:8 row_mask:0xf bank_mask:0xc")
        for h in range(2):
            a(f"v_add_f32_dpp v{TT+4+h}, v{TT+2*h}, v{TT+2*h} row_shl:4 row_mask:0xf bank_mask:0x5")
            a(f"v_add_f32_dpp v{TT+4+h}, v{TT+2*h+1}, v{TT+2*h+1} row_shr:4 row_mask:0xf bank_mask:0xa")
        a("s_nop 0")
        for qp in ("[1,0,3,2]","[2,3,0,1]"):
            for h in range(2): a(f"v_add_f32_dpp v{TT+4+h}, v{TT+4+h}, v{TT+4+h} quad_perm:{qp} {DPPF}")
            a("s_nop 0")
        a(f"v_cvt_pk_bf16_f32 v{TT}, v{TT+4}, v{TT+5}")
        a(f"v_lshlrev_b32 v{TT+1}, 16, v{TT}"); a(f"v_and_b32 v{TT+2}, s75, v{TT}")
        a(f"v_mul_f32 v{TT+1}, s74, v{TT+1}"); a(f"v_mul_f32 v{TT+2}, s74, v{TT+2}")
        a(f"v_cvt_pk_bf16_f32 v{TT}, v{TT+1}, v{TT+2}")
        a(f"v_lshlrev_b32 v{14+2*d}, 16, v{TT}"); a(f"v_and_b32 v{15+2*d}, s75, v{TT}")
    a("v_max3_f32 v40, v14, v15, v16"); a("v_max3_f32 v41, v17, v18, v19"); a("v_max3_f32 v40, v40, v20, v21"); a("v_max_f32 v40, v40, v41")
    dpp("v_max_f32",40,"row_ror:4"); dpp("v_max_f32",40,"row_ror:8"); xrow("v_max_f32",40,41)
    a("s_mov_b32 s74, 0x%x"%LOG2E)
    a("v_mul_f32 v36, s74, v40")
    for k in range(8): a(f"v_fma_f32 v{14+k}, v{14+k}, s74, -v36")
    for k in range(8): a(f"v_exp_f32 v{14+k}, v{14+k}")
    a(f"v_mov_b32 v38, s{SN}")
    a("v_add_f32 v37, v14, v15"); a("v_add_f32 v40, v16, v17"); a("v_add_f32 v37, v37, v18"); a("v_add_f32 v40, v40, v19"); a("v_add_f32 v37, v37, v20"); a("v_add_f32 v40, v40, v21"); a("v_add_f32 v37, v37, v40")
    for k in range(8): a(f"v_cvt_pk_bf16_f32 v{14+k}, v{14+k}, v{14+k}")
    dpp("v_add_f32",37,"row_ror:4",nop=False); dpp("v_add_f32",37,"row_ror:8"); xrow("v_add_f32",37,41)
    a(f"v_mov_b32 v39, s{SN}")
    if STC:
        a("s_lshl_b32 s61, s56, 3"); a("v_mov_b32 v40, s61"); a("v_mov_b32 v41, 1")
        a("s_mov_b64 exec, 1")
        a(f"ds_write_b64 v40, v[36:37] offset:{LS}")
        a(f"ds_add_rtn_u32 v41, v45, v41 offset:{LC}")
        a("s_mov_b64 exec, -1")
        a("v_and_b32 v40, 7, v1"); a("v_lshlrev_b32 v40, 3, v40")
        a("s_waitcnt lgkmcnt(0)")
        a("v_readfirstlane_b32 s61, v41")
        a("s_nop 0")
        a("s_cmp_lg_u32 s61, 7"); a("s_cbranch_scc1 L_nost")
        a(f"ds_read_b64 v[42:43], v40 offset:{LS}")
        a("s_lshl_b32 s61, s59, 4"); a(f"s_mul_i32 s62, s81, {RSTR}"); a("s_add_u32 s61, s61, s62"); a(f"s_add_u32 s61, s61, {RST}")
        a("s_waitcnt lgkmcnt(0)")
        a("v_mov_b32 v36, v42")
        for ctrl in ("quad_perm:[1,0,3,2]","quad_perm:[2,3,0,1]","row_half_mirror"): dpp("v_max_f32",36,ctrl)
        a("v_sub_f32 v37, v42, v36"); a("v_exp_f32 v37, v37"); a("s_nop 0"); a("v_mul_f32 v37, v37, v43")
        for ctrl in ("quad_perm:[1,0,3,2]","quad_perm:[2,3,0,1]","row_half_mirror"): dpp("v_add_f32",37,ctrl)
        a("s_mov_b64 exec, 1")
        a("buffer_store_dwordx4 v[36:39], v45, s[40:43], s61 offen sc1")
        a("s_mov_b64 exec, -1")
        g.lab("L_nost")
    else:
        a("s_lshl_b32 s61, s59, 3"); a("s_add_u32 s61, s61, s56"); a("s_lshl_b32 s61, s61, 4"); a(f"s_mul_i32 s62, s81, {RSTR}"); a("s_add_u32 s61, s61, s62"); a(f"s_add_u32 s61, s61, {RST}")
        a("s_mov_b64 exec, 1")
        a("buffer_store_dwordx4 v[36:39], v45, s[40:43], s61 offen sc1")
        a("s_mov_b64 exec, -1")
    stamp(3)
    a("s_cmp_eq_u32 s3, 3"); a("s_cbranch_scc1 L_ffn2")
    g.lab("L_rest")
    prio(0)
    for t in R[NEX:]: sload(t)
    a("v_lshlrev_b32 v36, 5, v4"); a("v_lshl_add_u32 v36, v3, 4, v36")
    a(f"s_mul_i32 s61, s56, {LO_STR}"); a("v_add_u32 v41, s61, v36")
    a("v_and_b32 v37, 0x1f0, v2")
    a(f"s_mul_i32 s61, s56, {LY_STR}"); a("v_add_u32 v42, s61, v37")
    a("v_and_b32 v36, 7, v1"); a(f"v_mul_u32_u24 v40, {LO_STR}, v36"); a("v_lshl_add_u32 v40, v3, 4, v40"); a("s_lshl_b32 s61, s56, 6"); a("v_add_u32 v40, s61, v40")
    if STC: a("v_lshlrev_b32 v43, 2, v36")
    else: a("s_lshl_b32 s61, s59, 5"); a("v_lshl_add_u32 v43, v36, 2, s61")
    a("s_mul_i32 s76, s59, 2560"); a(f"s_mul_i32 s62, s81, {RSTR}"); a("s_add_u32 s76, s76, s62"); a(f"s_add_u32 s76, s76, {RY}")
    a("s_cmp_eq_u32 s3, 5"); a("s_cbranch_scc1 L_c1")
    a("s_cmp_eq_u32 s3, 2"); a("s_cbranch_scc1 L_s1")
    if YW:
        a("s_cmp_lg_u32 s56, 1"); a("s_cbranch_scc1 L_vphase")
        a("v_lshlrev_b32 v36, 6, v1"); a("s_mov_b32 exec_hi, 0xff")
        a("buffer_load_dword v10, v36, s[40:43], s76 offen%s"%(" sc1" if YW==1 else ""))
        a("s_mov_b32 exec_hi, -1")
    g.lab("L_vphase")
    beta=[0,2,1,3]
    def buildA(i):
        A=28+4*(i%2)
        for r in range(4):
            a(f"v_and_b32_dpp v{A+r}, v{14+i//4}, v{6+r} row_newbcast:{4*beta[i%4]} {DPPF}")
    buildA(0)
    for i in range(32):
        if i<31: buildA(i+1)
        g.wait(("V",i))
        A=28+4*(i%2)
        C="0" if i==0 else "v[24:27]"
        a(f"v_mfma_f32_16x16x32_bf16 v[24:27], {r4(A)}, {r4(SL(slot_of[('V',i)]))}, {C}")
    a("s_mov_b64 exec, 0xffffffff")
    a("s_nop 6")
    a(f"ds_write_b128 v41, v[24:27] offset:{LO}")
    a("s_mov_b64 exec, -1")
    stamp(4)
    a("s_cmp_eq_u32 s3, 2"); a("s_cbranch_scc1 L_w2stats")
    a("s_cmp_eq_u32 s3, 5"); a("s_cbranch_scc1 L_w3pre")
    g.lab("L_bar2")
    a("v_lshlrev_b32 v34, 4, v0")
    if YT:
        a("s_mul_i32 s61, s58, 40"); a("v_lshrrev_b32 v35, 2, v0"); a("v_add_u32 v35, s61, v35")
        a("v_lshrrev_b32 v31, 6, v35"); a("v_and_b32 v35, 63, v35"); a(f"v_mul_u32_u24 v35, {RSTR}, v35"); a("v_lshl_add_u32 v35, v31, 13, v35")
        a("v_and_b32 v31, 48, v34"); a("v_add_u32 v35, v35, v31")
        a("s_lshl_b32 s76, s57, 2"); a("s_add_u32 s76, s76, s59"); a("s_lshl_b32 s76, s76, 6"); a(f"s_add_u32 s76, s76, {RY}")
    def flagstore():
        a("s_cmp_lg_u32 s56, 7"); a("s_cbranch_scc1 L_nofl")
        if FPOS<2: a("s_mov_b64 exec, 1")
        a("buffer_store_dword v33, v32, s[40:43], s74 offen sc1")
        if FPOS<2: a("s_mov_b64 exec, -1")
        g.lab("L_nofl")
    if FIN>=2:
        a(f"v_mov_b32 v33, s{SN}"); a("v_lshlrev_b32 v32, 24, v1")
        a("s_lshl_b32 s74, s59, 7"); a(f"s_mul_i32 s62, s81, {RSTR}"); a("s_add_u32 s74, s74, s62"); a(f"s_add_u32 s74, s74, {RFL}")
        a("s_waitcnt vmcnt(0)")
    a("s_waitcnt lgkmcnt(0)")
    a("s_barrier")
    stamp(5)
    a(f"ds_read_b128 v[36:39], v40 offset:{LO}")
    a(f"ds_read_b32 v44, v43 offset:{LF}")
    if FIN>=2:
        if FPOS==0: flagstore()
        a("s_waitcnt lgkmcnt(0)")
    else: a("s_waitcnt vmcnt(0) lgkmcnt(0)")
    for k in range(4): a(f"v_mul_f32 v{36+k}, v44, v{36+k}")
    for ctrl in ("quad_perm:[1,0,3,2]","quad_perm:[2,3,0,1]","row_half_mirror"):
        for k in range(4): a(f"v_add_f32_dpp v{36+k}, v{36+k}, v{36+k} {ctrl} {DPPF}")
    for k in range(4): a(f"v_cvt_pk_bf16_f32 v{36+k}, v{36+k}, v{36+k}")
    vslots=sorted(slot_of[("V",i)] for i in range(32))
    YAs=vslots[0:5]; ABs=vslots[5:9]
    def AND(k,r): a(f"v_and_b32 v{SL(ABs[k])+r}, v{36+k}, v{6+r}")
    def M(cb,aa):
        C="0" if aa==0 else r4(SL(YAs[cb]))
        a(f"v_mfma_f32_16x16x32_bf16 {r4(SL(YAs[cb]))}, {r4(SL(ABs[aa]))}, {r4(SL(slot_of[('O',aa*5+cb)]))}, {C}")
    def W(cb): a(f"ds_write_b128 v42, {r4(SL(YAs[cb]))} offset:{LY+512*cb}")
    for r in range(4): AND(0,r)
    rest=[(k,r) for k in range(1,4) for r in range(4)]
    AND(*rest.pop(0)); AND(*rest.pop(0))
    for cb in range(5):
        M(cb,0)
        for _ in range(3 if cb<2 else 2):
            if rest: AND(*rest.pop(0))
    a("s_nop 0")
    for cb in range(5):
        if FIN>=2 and FPOS==2+cb: flagstore()
        for aa in range(1,4): M(cb,aa)
        if cb>=2: W(cb-2); a("s_nop 0")
        else: a("s_nop 1")
    a("s_nop 0"); W(3); a("s_nop 3"); W(4)
    if FIN>=2 and FPOS==1: flagstore()
    a("s_waitcnt lgkmcnt(0)")
    a("s_barrier")
    stamp(6)
    a("s_cmp_ge_u32 s56, 3"); a("s_cbranch_scc1 L_fin")
    a("v_cmp_gt_u32 vcc, 160, v0"); a("s_and_saveexec_b64 s[78:79], vcc")
    for w in range(8): a(f"ds_read_b128 {r4(SL(w))}, v34 offset:{LY+LY_STR*w}")
    a("s_waitcnt lgkmcnt(0)" if stamps else "s_waitcnt lgkmcnt(4)")
    pkadd(SL(0),SL(1)); pkadd(SL(2),SL(3)); pkadd(SL(0),SL(2))
    a("s_waitcnt lgkmcnt(0)")
    pkadd(SL(4),SL(5)); pkadd(SL(6),SL(7)); pkadd(SL(4),SL(6)); pkadd(SL(0),SL(4))
    tag(SL(0))
    a(f"buffer_store_dwordx4 {r4(SL(0))}, v{35 if YT else 34}, s[40:43], s76 offen {['sc1','sc0 sc1','sc1 nt','sc0 sc1 nt'][PS]}")
    if stamps==3: stamp(3,3); a("s_waitcnt vmcnt(0)"); stamp(4,3)
    a("s_mov_b64 exec, -1")
    a("s_branch L_done")
    g.lab("L_fin")
    if HELP: a("s_cmp_eq_u32 s3, 6"); a("s_cbranch_scc1 L_help")
    a("s_cmp_lg_u32 s3, 5"); a("s_cbranch_scc1 L_done")
    a("s_mov_b32 s80, 0")
    srd(52,22,2560)
    if FIN==2:
        a("v_lshrrev_b32 v36, 2, v1"); a(f"v_mul_u32_u24 v36, {RSTR}, v36"); a("v_and_b32 v37, 3, v1"); a("v_lshl_add_u32 v36, v37, 7, v36")
        a("s_cmp_ge_u32 s83, 40"); a(f"s_cselect_b32 s61, {32*RSTR}, 0"); a(f"s_add_u32 s61, s61, {RFL}"); a(f"s_add_u32 s62, s61, {16*RSTR}")
        g.lab("L_fl_poll")
        a("buffer_load_dword v37, v36, s[40:43], s61 offen sc1")
        a("buffer_load_dword v38, v36, s[40:43], s62 offen sc1")
        a("s_waitcnt vmcnt(0)")
        a(f"v_cmp_ne_u32 vcc, s{SN}, v37"); a(f"v_cmp_ne_u32 s[78:79], s{SN}, v38"); a("s_or_b64 vcc, vcc, s[78:79]")
        a("s_cbranch_scc0 L_fl_ok")
        retry("L_fl_poll",FSL)
        g.lab("L_fl_ok")
        a("s_mov_b32 s80, 0")
        if FDEL: a(f"s_sleep {FDEL}")
    if FIN==3:
        a("v_lshlrev_b32 v36, 7, v1")
        a("s_cmp_ge_u32 s83, 40"); a("s_cselect_b32 s61, 16384, 0"); a(f"s_add_u32 s61, s61, {FL_OFF}"); a("s_add_u32 s62, s61, 8192")
        SO=[63,64,65,66,67,68,69,70]
        for i in range(1,8): a(f"s_add_u32 s{SO[i]}, s{SO[i-1]}, 40960")
        a("s_mov_b64 s[28:29], -1"); a("s_mov_b64 s[30:31], -1"); a("s_mov_b64 s[32:33], -1"); a("s_mov_b64 s[34:35], -1"); a("s_mov_b64 s[36:37], 0"); a("s_mov_b64 s[38:39], 0")
        a("s_mov_b32 s71, 0")
        g.lab("L_fl_poll")
        stamp(3,3)
        for i in range(8):
            a(f"s_bfe_u32 s72, s{28+i//2}, {(16<<16)|(16*(i%2)):#x}"); a(f"s_cbranch_scc1 L_fg{i}")
            a(f"buffer_load_dwordx4 {r4(SL(i))}, v45, s[40:43], s{SO[i]} offen sc1")
            a(f"s_bitset1_b32 s{36+i//2}, {16*(i%2)}"); a("s_add_u32 s71, s71, 1")
            g.lab(f"L_fg{i}")
        a("s_cmp_eq_u32 s71, 8"); a("s_cbranch_scc1 L_fin_chk")
        a("buffer_load_dword v37, v36, s[40:43], s61 offen sc1")
        a("buffer_load_dword v38, v36, s[40:43], s62 offen sc1")
        if FDEL:
            a("s_or_b64 s[28:29], s[32:33], s[36:37]"); a("s_or_b64 s[30:31], s[34:35], s[38:39]")
        a("s_waitcnt vmcnt(0)")
        a(f"v_cmp_ne_u32 s[32:33], s{SN}, v37"); a(f"v_cmp_ne_u32 s[34:35], s{SN}, v38")
        if not FDEL:
            a("s_or_b64 s[28:29], s[32:33], s[36:37]"); a("s_or_b64 s[30:31], s[34:35], s[38:39]")
        a("s_add_u32 s80, s80, 1"); a("s_cmp_lt_u32 s80, 0x10000"); a("s_cbranch_scc1 L_fl_poll")
    if FIN in (0,2,3):
        g.lab("L_fin_poll")
        stamp(3,3)
        a("s_mov_b32 s62, s63")
        for i in range(8):
            a(f"buffer_load_dwordx4 {r4(SL(i))}, v45, s[40:43], s62 offen {['sc1','sc0 sc1','sc1 nt','sc0 sc1 nt'][PL]}")
            if i<7: a(f"s_add_u32 s62, s62, {1024 if YT else 4*RSTR}")
        g.lab("L_fin_chk")
        if PIPE:
            for i in range(8):
                b=SL(i)
                a(f"s_waitcnt vmcnt({7-i})")
                for k in range(4): a(f"v_xor_b32 v{b+k}, s{T[k]}, v{b+k}")
                if i==0: a(f"v_or3_b32 v36, v{b}, v{b+1}, v{b+2}"); a(f"v_or_b32 v36, v36, v{b+3}")
                else:
                    a(f"v_or3_b32 v36, v36, v{b}, v{b+1}"); a(f"v_or3_b32 v36, v36, v{b+2}, v{b+3}")
                    pkadd(SL(0),b)
            a("v_and_b32 v36, 15, v36"); a("v_cmp_ne_u32 vcc, 0, v36"); a("s_cmp_eq_u64 vcc, 0")
        else:
            a("s_waitcnt vmcnt(0)")
            stamp(4,3)
            untag([SL(i) for i in range(8)],36)
        a("s_cbranch_scc1 L_fin_ok")
        retry("L_fin_poll",SLEEPF)
    else:
        MK=[28,30,32,34,36,38,4,6]
        SO=[63,64,65,66,67,68,69,70]
        for i in range(8):
            a(f"s_mov_b64 s[{MK[i]}:{MK[i]+1}], -1")
            if i: a(f"s_add_u32 s{SO[i]}, s{SO[i-1]}, 40960")
        g.lab("L_fin_poll")
        stamp(3,3)
        for i in range(8):
            a(f"s_mov_b64 exec, s[{MK[i]}:{MK[i]+1}]"); a(f"s_cbranch_execz L_fa{i}")
            a(f"buffer_load_dwordx4 {r4(SL(i))}, v45, s[40:43], s{SO[i]} offen sc1")
            g.lab(f"L_fa{i}")
        a("s_mov_b32 s61, 0")
        a("s_waitcnt vmcnt(0)")
        stamp(4,3)
        for i in range(8):
            b=SL(i)
            a(f"s_mov_b64 exec, s[{MK[i]}:{MK[i]+1}]"); a(f"s_cbranch_execz L_fb{i}")
            for k in range(4): a(f"v_xor_b32 v{b+k}, s{T[k]}, v{b+k}")
            a(f"v_or3_b32 v36, v{b}, v{b+1}, v{b+2}"); a(f"v_or_b32 v36, v36, v{b+3}"); a("v_and_b32 v36, 15, v36")
            a(f"v_cmp_ne_u32 s[{MK[i]}:{MK[i]+1}], 0, v36")
            a(f"s_bcnt1_i32_b64 s62, s[{MK[i]}:{MK[i]+1}]"); a("s_add_u32 s61, s61, s62")
            g.lab(f"L_fb{i}")
        a("s_mov_b64 exec, -1")
        a("s_cmp_eq_u32 s61, 0"); a("s_cbranch_scc1 L_fin_ok")
        if not DBG&1:
            a(f"s_cmp_lt_u32 s61, {4*FTH}"); a("s_cbranch_scc1 L_fc"); a(f"s_sleep {SLEEPG}")
            g.lab("L_fc")
            a("s_add_u32 s80, s80, 1"); a("s_cmp_lt_u32 s80, 0x10000"); a("s_cbranch_scc1 L_fin_poll")
    g.lab("L_fin_ok")
    if not PIPE:
        pkadd(SL(0),SL(1)); pkadd(SL(2),SL(3)); pkadd(SL(4),SL(5)); pkadd(SL(6),SL(7)); pkadd(SL(0),SL(2)); pkadd(SL(4),SL(6)); pkadd(SL(0),SL(4))
    scatter_reduce(SL(0),38,36,37)
    a("v_cvt_pk_bf16_f32 v38, v38, v38"); a("v_lshlrev_b32 v38, 16, v38"); a("v_add_f32 v38, v46, v38")
    a("v_cvt_pk_bf16_f32 v38, v38, v38"); a("v_lshlrev_b32 v38, 16, v38"); a("v_add_f32 v38, v47, v38")
    a("v_cvt_pk_bf16_f32 v38, v38, v38")
    a("s_mov_b64 exec, 0xffff")
    a("buffer_store_short v38, v23, s[52:55], 0 offen"+["", " sc1", " sc0 sc1", " nt"][OSC])
    a("s_cmp_lg_u32 s83, 40"); a("s_cbranch_scc1 L_noep")
    a("s_mov_b64 exec, 1")
    a(f"buffer_store_dword v33, v32, s[40:43], s101 offen sc1")
    g.lab("L_noep")
    a("s_mov_b64 exec, -1")
    g.lab("L_done")
    if PAD:
        g.lab("L_pad")
        a("s_memrealtime s[98:99]"); a("s_waitcnt lgkmcnt(0)"); a("s_sub_u32 s98, s98, s100"); a(f"s_cmp_lt_u32 s98, {PAD*100}"); a("s_cbranch_scc1 L_pad")
    if stamps:
        stamp(7)
        a("s_waitcnt lgkmcnt(0)")
        a(f"s_add_u32 s52, s26, {STAMP_OFF}"); a("s_addc_u32 s53, s27, 0"); a("s_mov_b32 s54, 0x100000"); a("s_mov_b32 s55, 0x20000")
        for k in range(8): a(f"v_mov_b32 v{48+k}, s{84+2*k}")
        if stamps==3: a("v_mov_b32 v49, s80")
        a("s_lshl_b32 s61, s2, 3"); a("s_add_u32 s61, s61, s56"); a("s_lshl_b32 s61, s61, 5")
        a("v_mov_b32 v36, 0"); a("s_mov_b64 exec, 1")
        a("buffer_store_dwordx4 v[48:51], v36, s[52:55], s61 offen"); a("buffer_store_dwordx4 v[52:55], v36, s[52:55], s61 offen offset:16")
    g.lab("L_end")
    a("s_endpgm")

    if HELP:
        g.lab("L_help")
        a("s_cmp_ge_u32 s83, 40"); a("s_cselect_b32 s61, 1, 0"); a("s_mul_i32 s62, s61, 40"); a("s_sub_u32 s62, s83, s62")
        a("s_mul_i32 s63, s61, 327680"); a("s_lshl_b32 s74, s62, 6"); a("s_add_u32 s63, s63, s74"); a(f"s_add_u32 s63, s63, {Y_OFF}"); a("s_add_u32 s64, s63, 163840")
        a("v_mul_u32_u24 v45, 2560, v1"); a("v_lshlrev_b32 v36, 7, v1")
        a("s_lshl_b32 s61, s61, 14"); a(f"s_add_u32 s61, s61, {FL_OFF}"); a("s_add_u32 s62, s61, 8192")
        for k in (28,30,32,34,36,38): a(f"s_mov_b64 s[{k}:{k+1}], 0")
        a("s_mov_b32 s80, 0")
        g.lab("L_hp")
        a("buffer_load_dword v37, v36, s[40:43], s61 offen sc1")
        a("buffer_load_dword v38, v36, s[40:43], s62 offen sc1")
        for h in range(2):
            a(f"s_mov_b64 exec, s[{28+2*h}:{29+2*h}]"); a(f"s_cbranch_execz L_hs{h}")
            a(f"buffer_load_dword v{39+h}, v45, s[40:43], s{63+h} offen sc1")
            g.lab(f"L_hs{h}")
            a(f"s_or_b64 s[{36+2*h}:{37+2*h}], s[{36+2*h}:{37+2*h}], s[{28+2*h}:{29+2*h}]")
            a(f"s_andn2_b64 s[{28+2*h}:{29+2*h}], s[{32+2*h}:{33+2*h}], s[{36+2*h}:{37+2*h}]")
        a("s_mov_b64 exec, -1")
        a("s_waitcnt vmcnt(0)")
        a(f"v_cmp_eq_u32 s[32:33], s{SN}, v37"); a(f"v_cmp_eq_u32 s[34:35], s{SN}, v38")
        a("s_and_b64 s[78:79], s[32:33], s[34:35]"); a("s_cmp_eq_u64 s[78:79], -1"); a("s_cbranch_scc1 L_done")
        a(f"s_sleep {HELP}")
        a("s_add_u32 s80, s80, 1"); a("s_cmp_lt_u32 s80, 0x4000"); a("s_cbranch_scc1 L_hp")
        a("s_branch L_done")

    g.lab("L_s1")
    if STC: a("v_and_b32 v44, 0x30, v2"); a("v_lshlrev_b32 v45, 1, v43")
    else: a("v_and_b32 v44, 0x1f0, v2"); a("v_lshrrev_b32 v45, 2, v44")
    a(f"s_mul_i32 s77, s81, {RSTR}"); a(f"s_add_u32 s77, s77, {RST}")
    a("buffer_load_dwordx4 v[10:13], v44, s[40:43], s77 offen sc1")
    a("s_branch L_vphase")
    g.lab("L_w2stats")
    prio(3)
    a("s_mov_b32 s80, 0")
    a("s_branch L_w2_chk")
    g.lab("L_w2_poll")
    a("buffer_load_dwordx4 v[10:13], v44, s[40:43], s77 offen sc1")
    g.lab("L_w2_chk")
    a("s_waitcnt vmcnt(0)")
    a(f"v_cmp_ne_u32 vcc, s{SN}, v12"); a(f"v_cmp_ne_u32 s[78:79], s{SN}, v13"); a("s_or_b64 vcc, vcc, s[78:79]")
    a("s_cbranch_scc0 L_w2_ok")
    retry("L_w2_poll",8)
    g.lab("L_w2_ok")
    if STC:
        a(f"ds_read_b32 v39, v45 offset:{LS}")
        a("v_mov_b32 v38, v10")
        for ctrl in ("quad_perm:[1,0,3,2]","quad_perm:[2,3,0,1]"): dpp("v_max_f32",38,ctrl)
        a("v_sub_f32 v36, v10, v38"); a("v_exp_f32 v36, v36"); a("s_nop 0"); a("v_mul_f32 v37, v36, v11")
        for ctrl in ("quad_perm:[1,0,3,2]","quad_perm:[2,3,0,1]"): dpp("v_add_f32",37,ctrl)
        a("v_rcp_f32 v37, v37")
        a("s_waitcnt lgkmcnt(0)")
        a("v_sub_f32 v36, v39, v38"); a("v_exp_f32 v36, v36"); a("s_nop 0"); a("v_mul_f32 v36, v36, v37")
        a(f"ds_write_b32 v43, v36 offset:{LF}")
    else:
        a("v_mov_b32 v38, v10")
        for ctrl in ("quad_perm:[1,0,3,2]","quad_perm:[2,3,0,1]","row_half_mirror","row_mirror"): dpp("v_max_f32",38,ctrl)
        xrow("v_max_f32",38,39,steps=(16,))
        a("v_sub_f32 v36, v10, v38"); a("v_exp_f32 v36, v36"); a("s_nop 0"); a("v_mul_f32 v37, v36, v11")
        for ctrl in ("quad_perm:[1,0,3,2]","quad_perm:[2,3,0,1]","row_half_mirror","row_mirror"): dpp("v_add_f32",37,ctrl)
        xrow("v_add_f32",37,39,steps=(16,))
        a("v_rcp_f32 v37, v37"); a("s_nop 0"); a("v_mul_f32 v36, v36, v37")
        a(f"ds_write_b32 v45, v36 offset:{LF}")
    a("s_branch L_bar2")

    g.lab("L_c1")
    a("s_cmp_ge_u32 s83, 40"); a("s_cselect_b32 s61, 1, 0"); a("s_mul_i32 s62, s61, 40"); a("s_sub_u32 s62, s83, s62")
    a(f"s_mul_i32 s63, s61, {RSTR*32}"); a("s_lshl_b32 s74, s62, 6"); a("s_add_u32 s63, s63, s74"); a(f"s_add_u32 s63, s63, {RY}")
    a("v_lshrrev_b32 v36, 2, v1"); a("v_and_b32 v37, 3, v1")
    a("v_and_b32 v45, 3, v36"); a("v_mul_u32_u24 v45, 2560, v45"); a(f"v_mul_u32_u24 v38, {RSTR}, v3"); a("v_add_u32 v45, v38, v45"); a("v_lshl_add_u32 v45, v37, 4, v45")
    if YT:
        a("v_mov_b32 v45, v2")
        a("s_and_b32 s63, s83, 63"); a(f"s_mul_i32 s63, s63, {RSTR}"); a("s_lshr_b32 s74, s83, 6"); a("s_lshl_b32 s74, s74, 13"); a("s_add_u32 s63, s63, s74"); a(f"s_add_u32 s63, s63, {RY}")
    a(f"v_mul_u32_u24 v44, {RSTR*2}, v36"); a("v_lshl_add_u32 v44, v37, 4, v44")
    a("s_lshr_b32 s75, s62, 3"); a("s_lshl_b32 s75, s75, 10"); a("s_lshl_b32 s74, s61, 9"); a("s_add_u32 s75, s75, s74"); a("s_and_b32 s74, s62, 7"); a("s_lshl_b32 s74, s74, 6"); a("s_add_u32 s75, s75, s74"); a(f"s_add_u32 s75, s75, {RF2}")
    a(f"s_add_u32 s77, s75, {32*RSTR}")
    a("v_and_b32 v38, 1, v36"); a("v_lshlrev_b32 v38, 1, v38"); a("v_bfe_u32 v39, v36, 1, 1"); a("v_or_b32 v38, v38, v39")
    a("v_lshl_add_u32 v38, v37, 3, v38"); a("v_lshlrev_b32 v38, 1, v38")
    a("s_mul_i32 s61, s61, 1280"); a("s_lshr_b32 s74, s62, 3"); a("s_lshl_b32 s74, s74, 8"); a("s_add_u32 s61, s61, s74")
    a("s_and_b32 s74, s62, 3"); a("s_lshl_b32 s74, s74, 6"); a("s_add_u32 s61, s61, s74")
    a("s_and_b32 s74, s62, 4"); a("s_lshl_b32 s74, s74, 1"); a("s_add_u32 s61, s61, s74"); a("v_add_u32 v23, s61, v38")
    srd(48,4,2560)
    a("buffer_load_ushort v46, v23, s[48:51], 0 offen")
    def f2loads():
        for k in range(4): a(f"v_mov_b32 v{36+k}, s{T[k]}")
        a("buffer_load_dwordx4 v[10:13], v44, s[40:43], s75 offen sc1")
        a("s_mov_b32 exec_hi, 0xfff")
        a("buffer_load_dwordx4 v[36:39], v44, s[40:43], s77 offen sc1")
        a("s_mov_b32 exec_hi, -1")
    f2loads()
    a("s_branch L_vphase")
    g.lab("L_w3pre")
    prio(3)
    a("s_mov_b32 s80, 0")
    a("s_branch L_w3_chk")
    g.lab("L_w3_poll")
    f2loads()
    g.lab("L_w3_chk")
    a("s_waitcnt vmcnt(0)")
    untag([10,36],28)
    a("s_cbranch_scc1 L_w3_ok")
    retry("L_w3_poll",16)
    g.lab("L_w3_ok")
    pkadd(10,36)
    scatter_reduce(10,47,28,29)
    a("v_cvt_pk_bf16_f32 v47, v47, v47"); a("v_lshlrev_b32 v47, 16, v47"); a("v_lshlrev_b32 v46, 16, v46")
    a("s_branch L_bar2")

    g.lab("L_unit2")
    masks(36,37)
    a("s_cmp_lg_u32 s56, 5"); a("s_cbranch_scc1 L_unit3")
    a("s_mov_b32 s61, 0xffff0000")
    a(f"s_waitcnt vmcnt({10 if ASYM else 8})")
    stamp(3,2)
    U=SL(12); X=24
    for k in range(10):
        a(f"v_lshlrev_b32 v{U+2*k}, 16, v{X+k}"); a(f"v_and_b32 v{U+2*k+1}, s61, v{X+k}")
    a(f"v_add_f32 v14, v{U}, v{U+1}"); a(f"v_add_f32 v15, v{U+2}, v{U+3}")
    for k in range(4,20,2):
        a(f"v_add_f32 v14, v14, v{U+k}"); a(f"v_add_f32 v15, v15, v{U+k+1}")
    a("v_add_f32 v14, v14, v15")
    def red32(v,t):
        for ctrl in ("quad_perm:[1,0,3,2]","quad_perm:[2,3,0,1]","row_half_mirror","row_mirror"): dpp("v_add_f32",v,ctrl)
        xrow("v_add_f32",v,t,steps=(16,))
    red32(14,15)
    a("s_mov_b32 s62, 0x3acccccd")
    a("v_mul_f32 v14, s62, v14")
    for k in range(20): a(f"v_sub_f32 v{U+20+k}, v{U+k}, v14")
    a(f"v_mul_f32 v16, v{U+20}, v{U+20}"); a(f"v_mul_f32 v17, v{U+21}, v{U+21}")
    for k in range(2,20,2):
        a(f"v_fmac_f32 v16, v{U+20+k}, v{U+20+k}"); a(f"v_fmac_f32 v17, v{U+21+k}, v{U+21+k}")
    a("v_add_f32 v16, v16, v17")
    red32(16,15)
    a("v_mul_f32 v16, s62, v16")
    a("v_cvt_pk_bf16_f32 v15, v14, v16"); a("v_lshlrev_b32 v14, 16, v15"); a("v_and_b32 v16, s61, v15")
    a("v_add_f32 v16, 0x3727c5ac, v16"); a("v_cvt_pk_bf16_f32 v16, v16, v16"); a("v_and_b32 v16, s61, v16")
    a("v_sqrt_f32 v16, v16"); a("s_nop 0"); a("v_cvt_pk_bf16_f32 v16, v16, v16"); a("v_and_b32 v16, s61, v16")
    a("v_rcp_f32 v16, v16")
    for k in range(20): a(f"v_sub_f32 v{U+k}, v{U+k}, v14")
    for k in range(10): a(f"v_cvt_pk_bf16_f32 v{X+k}, v{U+2*k}, v{U+2*k+1}")
    for k in range(10):
        a(f"v_lshlrev_b32 v{U+2*k}, 16, v{X+k}"); a(f"v_and_b32 v{U+2*k+1}, s61, v{X+k}")
    for k in range(20): a(f"v_mul_f32 v{U+k}, v{U+k}, v16")
    for k in range(10): a(f"v_cvt_pk_bf16_f32 v{X+k}, v{U+2*k}, v{U+2*k+1}")
    for k in range(10): a(f"v_min_u32 v{X+k}, -2, v{X+k}")
    for k in range(5): a(f"ds_write_b64 v12, v[{X+2*k}:{X+2*k+1}] offset:{LX+256*k}")
    stamp(4,2)
    g.lab("L_unit3")
    a("v_bfe_u32 v36, v1, 3, 1"); a("v_mul_u32_u24 v36, 1280, v36"); a("v_lshl_add_u32 v37, v22, 1, v36")
    a("s_mov_b32 s61, 0x01000100"); a("s_mov_b32 s62, 0x03020302")
    a("s_waitcnt vmcnt(0)")
    a("s_cmp_lg_u32 s56, 4"); a("s_cbranch_scc1 L_u2a")
    stamp(3,2)
    a("v_mov_b32 v21, 0")
    a("v_add_u32 v20, 1, v20"); a("v_and_b32 v20, 0x7fffffff, v20")
    a(f"ds_write_b32 v21, v20 offset:{LN_}")
    settags(20)
    g.lab("L_u2a")
    a("s_mov_b32 s80, 0")
    g.lab("L_u2x")
    for k in range(NU//2): a(f"ds_read_b32 v{14+k}, v37 offset:{LX+4*k}")
    a("s_waitcnt lgkmcnt(0)")
    ldsvalid([14+k for k in range(NU//2)],36)
    a("s_cbranch_scc1 L_u2b")
    retry("L_u2x",1,0x100000,lds=True)
    g.lab("L_u2b")
    def buildX(src,i):
        A=28+4*(i%2)
        a(f"v_perm_b32 v36, v{src+i//2}, v{src+i//2}, s{61+i%2}")
        for r in range(4): a(f"v_and_b32 v{A+r}, v36, v{6+r}")
    buildX(14,0)
    for i in range(NU):
        if i==8 and not ASYM: a("s_cmp_eq_u32 s70, 8"); a("s_cbranch_scc1 L_u8")
        if i<NU-1: buildX(14,i+1)
        else: a("s_nop 0")
        C="0" if i==0 else "v[40:43]"
        a(f"v_mfma_f32_16x16x32_bf16 v[40:43], {r4(28+4*(i%2))}, {r4(SL(32+i))}, {C}")
    g.lab("L_u8")
    a("s_cmp_eq_u32 s56, 4"); a("s_cbranch_scc1 L_u2c")
    a("s_nop 5")
    for k in range(4): a(f"v_min_u32 v{40+k}, -2, v{40+k}")
    a(f"ds_write_b128 v13, v[40:43] offset:{LU}")
    a("s_branch L_pref")
    g.lab("L_u2c")
    a("s_nop 3")
    a("s_mov_b32 s80, 0")
    g.lab("L_u2w")
    for k in range(3): a(f"ds_read_b128 {r4(28+4*k)}, v2 offset:{LU+1024*(k+1)}")
    a("s_waitcnt lgkmcnt(0)")
    ldsvalid(list(range(28,40)),44)
    a("s_cbranch_scc1 L_u2ok")
    retry("L_u2w",1,0x100000,lds=True)
    g.lab("L_u2ok")
    pkadd(40,28); pkadd(32,36); pkadd(40,32)
    stamp(4,2)
    tag(40)
    a("buffer_store_dwordx4 v[40:43], v2, s[40:43], s75 offen sc1")
    a("s_branch L_pref")

    g.lab("L_poller")
    prio(3)
    stamp(3,2)
    a("s_cmp_ge_i32 s66, 0"); a("s_cbranch_scc1 L_pn")
    a(f"s_waitcnt vmcnt({32-RPOS})")
    a("v_add_u32 v20, 1, v20"); a("v_and_b32 v20, 0x7fffffff, v20")
    a(f"ds_write_b32 v21, v20 offset:{LN_}")
    g.lab("L_pn")
    a("s_mov_b32 s80, 0")
    g.lab("L_pn2")
    a(f"ds_read_b32 v20, v21 offset:{LN_}")
    a("s_waitcnt lgkmcnt(0)")
    a("v_cmp_eq_u32 vcc, -1, v20"); a("s_cmp_eq_u64 vcc, 0"); a("s_cbranch_scc1 L_pn3")
    retry("L_pn2",2,0x100000,lds=True)
    g.lab("L_pn3")
    settags(20)
    stamp(5,2)
    a("v_lshrrev_b32 v18, 5, v1"); a("v_lshlrev_b32 v18, 10, v18"); a("v_and_b32 v19, 0x1f0, v2"); a("v_add_u32 v18, v18, v19")
    a("v_and_b32 v19, 1, v3"); a("v_lshlrev_b32 v19, 3, v19"); a("v_lshl_add_u32 v19, v4, 4, v19")
    a(f"s_mul_i32 s61, s57, {RSTR}"); a("s_lshl_b32 s62, s58, 9"); a("s_add_u32 s61, s61, s62")
    a("s_mov_b32 s80, 0")
    g.lab("L_w0_poll")
    a("buffer_load_dwordx4 v[28:31], v18, s[40:43], s61 offen sc1")
    a("buffer_load_dwordx4 v[32:35], v18, s[40:43], s61 offen offset:2048 sc1")
    a("s_waitcnt vmcnt(0)")
    untag([28,32],16)
    a("s_cbranch_scc1 L_w0_ok")
    retry("L_w0_poll",SLEEP2)
    g.lab("L_w0_ok")
    stamp(6,2)
    pkadd(28,32)
    for k in range(4): a(f"v_mov_b32 v{32+k}, v{28+k}")
    a("s_nop 0")
    for k in range(4): a(f"v_permlane32_swap_b32 v{28+k}, v{32+k}")
    pkadd(28,32)
    a("v_cvt_pk_bf16_f32 v28, v28, v29"); a("v_cvt_pk_bf16_f32 v29, v30, v31")
    a("v_min_u32 v28, -2, v28"); a("v_min_u32 v29, -2, v29")
    a(f"ds_write_b64 v19, v[28:29] offset:{LQ}")
    a("s_branch L_extras")

    g.lab("L_wdown")
    srd(52,20,1728*640*2)
    a("s_mul_i32 s77, s83, 205"); a("s_lshr_b32 s77, s77, 10")
    a("s_mul_i32 s62, s77, 5"); a("s_sub_u32 s62, s83, s62"); a("s_lshl_b32 s62, s62, 8")
    a("s_mul_i32 s61, s77, 81920"); a("s_add_u32 s61, s61, s62")
    a("v_mul_u32_u24 v36, 20480, v3"); a("v_lshl_add_u32 v36, v4, 4, v36")
    for t in range(16):
        a(f"buffer_load_dwordx4 {r4(SL(32+t))}, v36, s[52:55], s61 offen offset:{(t%4)*1280}{wnt}")
        a("s_add_u32 s61, s61, 5120" if t%4==3 else "s_nop 0")
    if F1E:
        a("s_add_u32 s61, s77, 32"); a(f"s_mul_i32 s61, s61, {RSTR}")
        for k in range(4): a(f"buffer_load_dwordx4 {r4(SL(48+k))}, v2, s[40:43], s61 offen offset:{1024*k} sc1"); a("s_nop 0")
    a("s_branch L_qw")
    g.lab("L_ffn2")
    GA=SL(48) if F1E else SL(0); GB=SL(4); GG=SL(5); GU=SL(6); TA=SL(7); TB=SL(7)+1; HC=SL(8)
    a("s_add_u32 s61, s77, 32"); a(f"s_mul_i32 s61, s61, {RSTR}")
    a("s_mov_b32 s80, 0")
    if F1E: a("s_branch L_w1_chk")
    g.lab("L_w1_poll")
    for k in range(4): a(f"buffer_load_dwordx4 {r4(GA+4*k)}, v2, s[40:43], s61 offen offset:{1024*k} sc1")
    g.lab("L_w1_chk")
    a("s_waitcnt vmcnt(0)")
    untag([GA+4*k for k in range(4)],TB)
    a("s_cbranch_scc1 L_w1_ok")
    retry("L_w1_poll",SLEEP2)
    g.lab("L_w1_ok")
    stamp(6,2)
    pkadd(GA,GA+4); pkadd(GA+8,GA+12); pkadd(GA,GA+8)
    a(f"v_and_b32 v{TB}, 8, v1"); a(f"v_cmp_eq_u32 vcc, 0, v{TB}")
    a("s_mov_b32 s61, 0xffff0000")
    for k in range(4): a(f"v_mov_b32_dpp v{GB+k}, v{GA+k} row_ror:8 {DPPF}")
    for k in range(4):
        a(f"v_cndmask_b32 v{GG+k}, v{GB+k}, v{GA+k}, vcc"); a(f"v_cndmask_b32 v{GU+k}, v{GA+k}, v{GB+k}, vcc")
    a("s_mov_b32 s62, 0x3d372713")
    a("s_mov_b32 s74, 0xc0135761")
    for k in range(4):
        gk=GG+k; uk=GU+k
        a(f"v_cvt_pk_bf16_f32 v{TA}, v{gk}, v{uk}"); a(f"v_lshlrev_b32 v{gk}, 16, v{TA}"); a(f"v_and_b32 v{uk}, s61, v{TA}")
        a(f"v_mul_f32 v{TB}, v{gk}, v{gk}"); a(f"v_mul_f32 v{TB}, s62, v{TB}"); a(f"v_fma_f32 v{TB}, v{TB}, v{gk}, v{gk}")
        a(f"v_mul_f32 v{TB}, s74, v{TB}"); a(f"v_exp_f32 v{TB}, v{TB}"); a("s_nop 0"); a(f"v_add_f32 v{TB}, 1.0, v{TB}"); a(f"v_rcp_f32 v{TB}, v{TB}"); a("s_nop 0")
        a(f"v_mul_f32 v{TB}, v{gk}, v{TB}"); a(f"v_cvt_pk_bf16_f32 v{TB}, v{TB}, v{TB}"); a(f"v_and_b32 v{TB}, s61, v{TB}")
        a(f"v_mul_f32 v{gk}, v{TB}, v{uk}")
    a(f"v_cvt_pk_bf16_f32 v{GU}, v{GG}, v{GG+1}"); a(f"v_cvt_pk_bf16_f32 v{GU+1}, v{GG+2}, v{GG+3}")
    a(f"v_lshrrev_b32 v{TA}, 1, v3"); a(f"v_lshlrev_b32 v{TA}, 7, v{TA}"); a(f"v_and_b32 v{TB}, 7, v1"); a(f"v_lshl_add_u32 v{TA}, v{TB}, 4, v{TA}"); a(f"v_and_b32 v{TB}, 1, v3"); a(f"v_lshl_add_u32 v{TA}, v{TB}, 3, v{TA}")
    a(f"ds_write_b64 v{TA}, v[{GU}:{GU+1}] offset:{LH}")
    a(f"v_bfe_u32 v{TB}, v1, 3, 1"); a(f"v_lshlrev_b32 v{TB}, 7, v{TB}"); a(f"v_lshl_add_u32 v{TB}, v3, 5, v{TB}")
    a(f"ds_read_b128 {r4(HC)}, v{TB} offset:{LH}"); a(f"ds_read_b128 {r4(HC+4)}, v{TB} offset:{LH+16}")
    a("s_mov_b32 s61, 0x01000100"); a("s_mov_b32 s62, 0x03020302")
    a("s_waitcnt lgkmcnt(0)")
    buildX(HC,0)
    for i in range(16):
        if i<15: buildX(HC,i+1)
        else: a("s_nop 0")
        C="0" if i==0 else "v[40:43]"
        a(f"v_mfma_f32_16x16x32_bf16 v[40:43], {r4(28+4*(i%2))}, {r4(SL(32+i))}, {C}")
    a("s_mul_i32 s62, s77, 5"); a("s_sub_u32 s62, s83, s62"); a("s_lshl_b32 s62, s62, 10"); a(f"s_mul_i32 s61, s77, {RSTR*2}"); a("s_add_u32 s61, s61, s62"); a(f"s_add_u32 s61, s61, {RF2}")
    a("s_nop 5")
    tag(40)
    a("buffer_store_dwordx4 v[40:43], v2, s[40:43], s61 offen sc1")
    a("s_mov_b32 s3, 4")
    prio(1)
    a("s_branch L_exl")

    g.lab("L_code_end")
    o.append('.section .rodata,"a"'); o.append(".p2align 6"); o.append(f".amdhsa_kernel {NAME}")
    for x in ["next_free_vgpr 256","next_free_sgpr 102","accum_offset 256","group_segment_fixed_size 0","kernarg_size 96","user_sgpr_count 2","user_sgpr_kernarg_segment_ptr 1","system_sgpr_workgroup_id_x 1","float_denorm_mode_32 3"]:
        o.append("  .amdhsa_"+x)
    o.append(".end_amdhsa_kernel")
    return "\n".join(o)+"\n"

if __name__=="__main__":
    import argparse
    ap=argparse.ArgumentParser(); ap.add_argument("out"); ap.add_argument("kw",nargs="*")
    ar=ap.parse_args()
    kw={}
    for x in ar.kw:
        k,v=x.split("="); kw[k]=int(v) if v.lstrip("-").isdigit() else v
    open(ar.out,"w").write(gen(**kw))
```

```python
import sys
NAME="parallel_sum__gqa_block_cached__geglu_ffn__decode_kernel"
HDR=open("parallel_sum__gqa_block_cached__geglu_ffn__decode.s.ref").read().split("; Override launch")[0]

RU=0; RST=4096; RFL=4608; RF2=5120; RY=10240
NFREE=20
STAMP_OFF=0x8000000
LQ=0; LN_=256; LF=320; LO=512; LO_STR=544; LY=LO+8*LO_STR; LY_STR=2560; LX=LY+8*LY_STR; LU=LX+4096; LH=LU+4096; LS=LH+256; LC=LS+64; LDS_BYTES=LC+64
LOG2E=0x3fb8aa3b
SCALE=0x3db504f3
DPPF="row_mask:0xf bank_mask:0xf"
T=[16,17,18,19]
SN=15

DOC="""; ---------------------------------------------------------------------------------------------
;  * workgroup = (batch b, head h, quarter of the 4096 keys); the 8 workgroups of a head share wg%8.
; ---------------------------------------------------------------------------------------------"""

class G:
    def __init__(s): s.o=[]; s.vm=[]
    def a(s,x): s.o.append("    "+x)
    def lab(s,x): s.o.append(x+":")
    def vmem(s,tag,x): s.a(x); s.vm.append(tag)
    def vreset(s): s.vm=[]
    def wait(s,tag):
        i=len(s.vm)-1-s.vm[::-1].index(tag)
        n=len(s.vm)-1-i
        assert n<=63
        s.a(f"s_waitcnt vmcnt({n})")

def mix(A,B):
    out=[]; ia=ib=0
    while ia<len(A) or ib<len(B):
        if ib>=len(B) or (ia<len(A) and ia*len(B)<=ib*len(A)): out.append(A[ia]); ia+=1
        else: out.append(B[ib]); ib+=1
    return out

def gen(KNT=1, WNT=1, ONT=0, stamps=0, NPRE0=6, NEX=12, SLEEP1=16, SLEEP2=8, SLEEPF=4, PAD=0, OLAST=0, RPOS=20, DBG=0, FW=7, PADAT=0, FIN=2, FTH=8, SLEEPG=24, YW=0, ROT=0, PL=0, PS=0, FPOS=3, FDEL=0, FSL=1, HELP=0, OSC=0, FAST=1, CW=0, RBSH=3, RSTR=32256, ASYM=1, STC=1, F7=1, F1E=0, YT=0, PIPE=1, SP3=0, UNEV=0, WDE=0, KO=0, OSPAN=32):
    WS_SIZE=64*RSTR
    g=G(); a=g.a
    knt=["", " nt", " sc1 nt", " sc0 nt", " sc0 sc1 nt", " sc1", " sc0 sc1"][KNT]; wnt=" nt" if WNT else ""; ont=["", " nt", " sc1", " sc0"][ONT]
    def stamp(k,mode=1):
        if PAD and PADAT==k+10*(mode-1) and PADAT: a("s_memrealtime s[100:101]"); a("s_waitcnt lgkmcnt(0)")
        if stamps==mode or (stamps and k in (0,1,2,7) and mode==1) or (stamps==3 and k in (5,6) and mode==1): a(f"s_memrealtime s[{84+2*k}:{85+2*k}]")
    def prio(p): a(f"s_setprio {p}")
    def xrow(op,v,t,steps=(16,32)):
        for st in steps:
            a(f"v_mov_b32 v{t}, v{v}"); a("s_nop 1"); a(f"v_permlane{st}_swap_b32 v{v}, v{t}"); a(f"{op} v{v}, v{v}, v{t}")
    def dpp(op,v,ctrl,nop=True):
        if nop: a("s_nop 1")
        a(f"{op}_dpp v{v}, v{v}, v{v} {ctrl} {DPPF}")
    def srd(d,p,size):
        a(f"s_mov_b32 s{d}, s{p}"); a(f"s_mov_b32 s{d+1}, s{p+1}"); a(f"s_mov_b32 s{d+2}, {size:#x}"); a(f"s_mov_b32 s{d+3}, 0x20000")
    def ldsvalid(regs,t):
        if len(regs)==2: a(f"v_max_u32 v{t}, v{regs[0]}, v{regs[1]}"); k=2
        else: a(f"v_max3_u32 v{t}, v{regs[0]}, v{regs[1]}, v{regs[2]}"); k=3
        while k+1<len(regs):
            a(f"v_max3_u32 v{t}, v{t}, v{regs[k]}, v{regs[k+1]}"); k+=2
        if k<len(regs): a(f"v_max_u32 v{t}, v{t}, v{regs[k]}")
        a(f"v_cmp_eq_u32 vcc, -1, v{t}")
        a("s_cmp_eq_u64 vcc, 0")
    def untag(bases,t):
        regs=[]
        for b in bases:
            for k in range(4): a(f"v_xor_b32 v{b+k}, s{T[k]}, v{b+k}"); regs.append(b+k)
        a(f"v_or3_b32 v{t}, v{regs[0]}, v{regs[1]}, v{regs[2]}"); k=3
        while k+1<len(regs):
            a(f"v_or3_b32 v{t}, v{t}, v{regs[k]}, v{regs[k+1]}"); k+=2
        if k<len(regs): a(f"v_or_b32 v{t}, v{t}, v{regs[k]}")
        a(f"v_and_b32 v{t}, 15, v{t}")
        a(f"v_cmp_ne_u32 vcc, 0, v{t}")
        a("s_cmp_eq_u64 vcc, 0")
    def tag(b):
        for k in range(4): a(f"v_and_or_b32 v{b+k}, v{b+k}, -16, s{T[k]}")
    def settags(v):
        a(f"v_readfirstlane_b32 s{SN}, v{v}")
        a("s_nop 0")
        for k in range(4): a(f"s_bfe_u32 s{T[k]}, s{SN}, {(4<<16)|(4*k):#x}")
    def retry(lab,sl,lim=0x10000,lds=False):
        if DBG&1 and not lds: return
        a(f"s_sleep {sl}"); a("s_add_u32 s80, s80, 1"); a(f"s_cmp_lt_u32 s80, {lim:#x}"); a(f"s_cbranch_scc1 {lab}")
    def rootpoll(tagn,v):
        a("s_mov_b32 s80, 0"); a("v_mov_b32 v21, 0")
        a(f"s_branch L_rp_chk{tagn}")
        g.lab(f"L_rp{tagn}")
        a(f"buffer_load_dword v{v}, v21, s[44:47], 0 offen sc1")
        a("s_waitcnt vmcnt(0)")
        g.lab(f"L_rp_chk{tagn}")
        a(f"v_cmp_eq_u32 vcc, 0, v{v}"); a("s_cmp_eq_u64 vcc, 0"); a(f"s_cbranch_scc1 L_rp_ok{tagn}")
        retry(f"L_rp{tagn}",SLEEP1)
        g.lab(f"L_rp_ok{tagn}")
        settags(v)
    def masks(t0,t1):
        a(f"v_and_b32 v{t0}, 1, v1"); a(f"v_lshlrev_b32 v{t0}, 4, v{t0}"); a(f"v_mov_b32 v{t1}, 0xffff"); a(f"v_lshlrev_b32 v{t0}, v{t0}, v{t1}")
        a(f"v_bfe_u32 v{t1}, v1, 1, 2")
        for r in range(4):
            a(f"v_cmp_eq_u32 vcc, {r}, v{t1}"); a("s_nop 1"); a(f"v_cndmask_b32 v{6+r}, 0, v{t0}, vcc")
    def pkadd(d,s):
        for k in range(2): a(f"v_pk_add_f32 v[{d+2*k}:{d+2*k+1}], v[{d+2*k}:{d+2*k+1}], v[{s+2*k}:{s+2*k+1}]")
    def scatter_reduce(b,dst,t0,t1):
        a("s_nop 1")
        a(f"v_add_f32_dpp v{t0}, v{b}, v{b} row_ror:8 row_mask:0xf bank_mask:0x3")
        a(f"v_add_f32_dpp v{t0}, v{b+1}, v{b+1} row_ror:8 row_mask:0xf bank_mask:0xc")
        a(f"v_add_f32_dpp v{t1}, v{b+2}, v{b+2} row_ror:8 row_mask:0xf bank_mask:0x3")
        a(f"v_add_f32_dpp v{t1}, v{b+3}, v{b+3} row_ror:8 row_mask:0xf bank_mask:0xc")
        a(f"v_add_f32_dpp v{dst}, v{t0}, v{t0} row_shl:4 row_mask:0xf bank_mask:0x5")
        a("s_nop 0")
        a(f"v_add_f32_dpp v{dst}, v{t1}, v{t1} row_shr:4 row_mask:0xf bank_mask:0xa")
        xrow("v_add_f32",dst,t0)
    SL=lambda i: 48+4*i
    def r4(b): return f"v[{b}:{b+3}]"
    o=g.o
    o.append(HDR.rstrip("\n"))
    o.append(f"; @launch grid=(256,1,1) block=(512,1,1) lds={LDS_BYTES}")
    o.append(DOC)
    o.append('.amdgcn_target "amdgcn-amd-amdhsa--gfx950"'); o.append(".text"); o.append(f".globl {NAME}"); o.append(".p2align 8"); o.append(f".type {NAME},@function"); o.append(f"{NAME}:")
    a("s_cmp_ge_u32 s2, 256"); a("s_cbranch_scc1 L_end")
    a("s_load_dwordx16 s[4:19], s[0:1], 0"); a("s_load_dwordx8 s[20:27], s[0:1], 64")
    stamp(0)
    if PAD: a("s_memrealtime s[100:101]")
    a("v_lshrrev_b32 v3, 6, v0"); a("v_and_b32 v1, 63, v0"); a("v_readfirstlane_b32 s56, v3"); a("v_lshlrev_b32 v2, 4, v1")
    a("s_and_b32 s57, s2, 7"); a("s_lshl_b32 s57, s57, 2"); a("s_lshr_b32 s61, s2, 3"); a("s_and_b32 s62, s61, 3"); a("s_add_u32 s57, s57, s62")
    a("s_lshr_b32 s58, s2, 7")
    a("s_lshr_b32 s59, s2, 5"); a("s_and_b32 s59, s59, 3")
    a("s_lshl_b32 s81, s58, 5"); a("s_add_u32 s81, s81, s57")
    a("s_lshl_b32 s64, s81, 20"); a("s_lshl_b32 s62, s59, 18"); a("s_add_u32 s64, s64, s62")
    a("s_lshr_b32 s62, s56, 2"); a("s_lshl_b32 s62, s62, 17"); a("s_add_u32 s64, s64, s62")
    a("s_and_b32 s69, s56, 3"); a("s_lshl_b32 s62, s69, 10"); a("s_add_u32 s64, s64, s62")
    if ROT:
        a("s_mov_b32 s100, s64")
        if ROT==1: a("s_lshr_b32 s62, s2, 3")
        elif ROT==2: a("s_mov_b32 s62, s2")
        elif ROT==3: a("s_mul_i32 s62, s2, 11")
        elif ROT==4: a("s_lshr_b32 s62, s2, 3"); a("s_lshl_b32 s62, s62, 2")
        elif ROT==5: a("s_mov_b32 s62, s57")
        elif ROT==6: a("s_and_b32 s62, s57, 30"); a("s_add_u32 s62, s62, s58")
        elif ROT==7: a("s_lshl_b32 s62, s2, 2")
        elif ROT==8: a("s_lshl_b32 s62, s58, 4"); a("s_xor_b32 s62, s62, s2")
        elif ROT==9: a("s_and_b32 s62, s2, 7")
        elif ROT==10: a("s_and_b32 s62, s2, 24")
        elif ROT==11: a("s_add_u32 s62, s2, s59")
        elif ROT==12: a("s_lshl_b32 s62, s59, 3"); a("s_add_u32 s62, s62, s2")
        a("s_and_b32 s62, s62, 31"); a("s_lshl_b32 s62, s62, 12"); a("s_or_b32 s64, s64, s62")
    a("s_mov_b32 s65, s64")
    a("s_mov_b32 s82, 0")
    if FAST:
        a("s_mov_b32 s30, 0x4000000"); a("s_mov_b32 s31, 0x20000")
        a("s_waitcnt lgkmcnt(0)")
        a("s_mov_b32 s28, s6"); a("s_mov_b32 s29, s7")
        for i in range(NPRE0):
            if i==0: stamp(3,4)
            a(f"buffer_load_dwordx4 {r4(SL(i))}, v2, s[28:31], s64 offen{knt}"); a("s_add_u32 s64, s64, 4096")
        if stamps==4:
            stamp(4,4)
            a("s_cmp_lg_u32 s56, 1"); a("s_cbranch_scc1 L_ns4")
            a(f"s_waitcnt vmcnt({NPRE0-1})"); stamp(5,4); a("s_waitcnt vmcnt(0)"); stamp(6,4)
            g.lab("L_ns4")
    if CW:
        a(f"s_cmp_ge_u32 s2, {CW}"); a("s_cbranch_scc1 L_nocw"); a("s_cmp_ge_u32 s56, 3"); a("s_cbranch_scc1 L_nocw")
        a("s_getpc_b64 s[62:63]")
        g.lab("L_pc")
        a("v_lshlrev_b32 v36, 7, v0"); a("v_min_u32 v36, L_code_end-L_pc-4, v36")
        a("global_load_dword v47, v36, s[62:63]")
        a("s_lshr_b32 s63, s2, 1"); a("s_and_b32 s63, s63, 3")
        g.lab("L_nocw")
    a("v_lshrrev_b32 v3, 4, v1"); a("v_and_b32 v4, 15, v1")
    if RBSH==3:
        a("s_bfe_u32 s63, s2, 0x20003"); a("s_lshr_b32 s60, s2, 5"); a("s_lshl_b32 s60, s60, 3")
        if ASYM: a("s_bfe_u32 s62, s2, 0x20001"); a("s_or_b32 s60, s60, s62"); a("s_and_b32 s62, s2, 1"); a("s_lshl_b32 s62, s62, 2"); a("s_or_b32 s60, s60, s62")
        else: a("s_and_b32 s62, s2, 7"); a("s_or_b32 s60, s60, s62")
    else:
        a("s_bfe_u32 s63, s2, 0x20005"); a("s_lshr_b32 s60, s2, 7"); a("s_lshl_b32 s60, s60, 5"); a("s_and_b32 s62, s2, 31"); a("s_or_b32 s60, s60, s62")
    if F7:
        a("s_mov_b32 s62, s60")
        for x,y in ((39,59),(47,60),(55,61)):
            a(f"s_cmp_eq_u32 s62, {x}"); a(f"s_cselect_b32 s60, {y}, s60"); a(f"s_cmp_eq_u32 s62, {y}"); a(f"s_cselect_b32 s60, {x}, s60")
    a("s_cmp_lt_u32 s60, 32")
    a("s_cselect_b32 s14, 1, 0"); a("s_mov_b32 s79, 0"); a("s_mov_b32 s78, 3456"); a("s_cselect_b32 s78, 8192, s78"); a("s_cselect_b32 s76, 8, 7"); a("s_cselect_b32 s77, 15, 7")
    a("s_and_b32 s74, s60, 31")
    a("s_sub_u32 s66, 58, s60")
    a("s_cselect_b32 s67, 0, %d"%(0 if DBG&2 else 1))
    a("s_lshl_b32 s71, s60, 2"); a("s_add_u32 s71, s71, s63")
    a(f"s_mul_i32 s75, s60, {RSTR}"); a("s_lshl_b32 s62, s63, 10"); a("s_add_u32 s75, s75, s62")
    if ASYM: a("s_mov_b32 s70, 10"); a("s_mov_b32 s68, 0")
    else: a("s_cmp_lt_u32 s63, 2"); a("s_cselect_b32 s70, 8, 12"); a("s_cselect_b32 s68, 0, -128")
    if UNEV:
        a("s_mov_b32 s70, 0x000e0c0e"); a("s_mov_b32 s68, 0xa0683800")
        a("s_bitcmp1_b32 s2, 0"); a("s_cselect_b32 s70, 0x0a0a0a0a, s70"); a("s_cselect_b32 s68, 0x78502800, s68")
        a("s_lshl_b32 s62, s69, 3"); a("s_lshr_b32 s70, s70, s62"); a("s_and_b32 s70, s70, 0xff"); a("s_lshr_b32 s68, s68, s62"); a("s_and_b32 s68, s68, 0xff")
        a("s_mul_i32 s62, s63, 160"); a("s_add_u32 s68, s68, s62")
    else:
        a("s_lshl_b32 s62, s63, 2"); a("s_add_u32 s62, s62, s69"); a("s_mul_i32 s62, s62, s70"); a("s_lshl_b32 s62, s62, 2"); a("s_add_u32 s68, s68, s62")
    a("v_mov_b32 v37, s68"); a("v_mad_u32_u24 v22, v3, s70, v37"); a("v_mul_lo_u32 v36, v22, s78")
    a("s_lshl_b32 s62, s74, s76"); a("v_and_b32 v37, s77, v1"); a("v_lshl_add_u32 v36, v37, 4, v36"); a("v_add_u32 v36, s62, v36"); a("v_mov_b32 v37, 0")
    a("v_and_b32 v38, 8, v1"); a("v_cmp_eq_u32 vcc, 0, v38")
    if ASYM:
        a("s_lshr_b32 s83, s2, 1")
        a("s_cmp_lt_u32 s83, 80"); a("s_cselect_b32 s61, %d, 0"%(0 if DBG&4 else 5))
        a("s_sub_u32 s71, s71, 240"); a("s_cmp_lt_u32 s71, 7"); a("s_cselect_b32 s61, %d, s61"%(0 if DBG&34 else 3)); a("s_cselect_b32 s62, s71, 0"); a("s_cselect_b32 s83, 128, s83"); a("s_add_u32 s83, s83, s62")
        a("s_bitcmp0_b32 s2, 0"); a("s_cselect_b32 s61, %d, s61"%(0 if DBG&34 else 3))
    else:
        a("s_lshl_b32 s83, s60, 1"); a("s_and_b32 s61, s63, 1"); a("s_add_u32 s83, s83, s61")
        a("s_cmp_lt_u32 s83, 80"); a("s_cselect_b32 s61, %d, 0"%(0 if DBG&4 else 5))
        a("s_cmp_lt_u32 s63, 2"); a("s_cselect_b32 s61, %d, s61"%(0 if DBG&34 else 3))
        a("s_sub_u32 s71, s71, 118")
        a("s_cmp_lt_u32 s71, 135"); a("s_cselect_b32 s62, %d, 0"%(0 if DBG&34 else 3))
        a("s_cmp_ge_i32 s66, 0"); a("s_cselect_b32 s61, s61, s62"); a("s_cselect_b32 s83, s83, s71")
    a("s_cmp_eq_u32 s61, 3"); a(f"s_cselect_b32 s62, {FW}, 3")
    a("s_cmp_eq_u32 s56, s62"); a("s_cselect_b32 s3, s61, 0")
    if HELP:
        a("s_cmp_eq_u32 s61, 5"); a("s_cselect_b32 s62, 4, 99"); a("s_cmp_eq_u32 s56, s62"); a("s_cselect_b32 s3, 6, s3")
    a("s_cmp_eq_u32 s56, 0"); a("s_cselect_b32 s3, 1, s3")
    a("s_cmp_eq_u32 s56, 2"); a("s_cselect_b32 s3, 2, s3")
    a("s_cmp_ge_u32 s56, 4"); a("s_cselect_b32 s67, s67, 0")
    for k in range(4): a(f"v_mov_b32 v{40+k}, -1")
    if not FAST:
        a("s_waitcnt lgkmcnt(0)")
        srd(28,6,64<<20)
    srd(40,26,WS_SIZE)
    a(f"s_mov_b32 s101, {63*RSTR}")
    if WDE:
        a("s_cmp_eq_u32 s3, 3"); a("s_cbranch_scc1 L_wdown")
        g.lab("L_wdret")
    a("s_cmp_eq_u32 s67, 1"); a("s_cbranch_scc0 L_pref")
    prio(3)
    a("v_lshrrev_b32 v38, 5, v1"); a("v_mul_u32_u24 v38, 1280, v38"); a("v_and_b32 v39, 31, v1"); a("v_lshl_add_u32 v12, v39, 3, v38")
    a("s_cmp_lg_u32 s56, 4"); a("s_cbranch_scc1 L_noe")
    a(f"buffer_load_dword v20, v37, s[40:43], s101 offen sc1")
    g.lab("L_noe")
    a("s_cmp_lg_u32 s56, 5"); a("s_cbranch_scc1 L_nox")
    srd(48,4,2560)
    for k in range(5): a(f"buffer_load_dwordx2 v[{24+2*k}:{25+2*k}], v12, s[48:51], 0 offen offset:{256*k}")
    g.lab("L_nox")
    a("s_cmp_eq_u32 s14, 1"); a("s_cselect_b32 s61, s10, s16"); a("s_cselect_b32 s62, s11, s17"); a("s_cselect_b32 s72, s10, s18"); a("s_cselect_b32 s73, s11, s19")
    a("v_mov_b32 v38, s72"); a("v_mov_b32 v39, s61"); a("v_cndmask_b32 v10, v38, v39, vcc")
    a("v_mov_b32 v38, s73"); a("v_mov_b32 v39, s62"); a("v_cndmask_b32 v11, v38, v39, vcc")
    a("v_lshl_add_u64 v[10:11], v[36:37], 0, v[10:11]")
    NU=14 if UNEV else 10 if ASYM else 12
    for i in range(NU):
        if i==8 and not ASYM: a("s_cmp_eq_u32 s70, 8"); a("s_cbranch_scc1 L_w8")
        if UNEV and i in (0,10,12): a(f"s_cmp_eq_u32 s70, {i}"); a("s_cbranch_scc1 L_w8")
        a(f"global_load_dwordx4 {r4(SL(32+i))}, v[10:11], off{wnt}")
        if i<NU-1: a("v_lshl_add_u64 v[10:11], v[10:11], 0, s[78:79]")
    g.lab("L_w8")
    a("s_lshl_b32 s61, s69, 10"); a("v_add_u32 v13, s61, v2"); a(f"ds_write_b128 v13, v[40:43] offset:{LX}")
    if UNEV:
        a("s_cmp_lg_u32 s70, 0"); a("s_cbranch_scc1 L_w9")
        for k in range(4): a(f"v_mov_b32 v{40+k}, 0")
        g.lab("L_w9")
    a(f"ds_write_b128 v13, v[40:43] offset:{LU}")
    a("s_waitcnt lgkmcnt(0)")
    a("s_barrier")
    a("s_mov_b32 s82, 1")
    a("s_branch L_unit2")
    g.lab("L_pref")
    prio(2)
    g.vreset()
    def kvload(kind,i,slot):
        srdn="s[28:31]" if kind=="K" else "s[32:35]"
        p=64 if kind=="K" else 65
        g.vmem((kind,i), f"buffer_load_dwordx4 {r4(SL(slot))}, v2, {srdn}, s{p} offen{knt}")
        a(f"s_add_u32 s{p}, s{p}, 4096")
        if ROT: a(f"s_and_b32 s{p}, s{p}, 0x1f000"); a(f"s_or_b32 s{p}, s{p}, s100")
    Vs=[("V",i) for i in range(32)]; Os=[("O",i) for i in range(20)]
    R=mix(Vs[:OSPAN],Os[KO:20-OLAST])+Vs[OSPAN:]+Os[20-OLAST:]
    slot_of={}
    for i in range(32): slot_of[("K",i)]=i
    for k,t in enumerate(R): slot_of[t]=(32+k) if k<20-KO else k-(20-KO)
    for k in range(KO): slot_of[("O",k)]=52-KO+k
    def wosetup():
        srd(36,12,4096*640*2)
        a("v_mul_u32_u24 v5, 5120, v3"); a("v_lshl_add_u32 v5, v4, 4, v5")
        a("s_lshl_b32 s72, s57, 7"); a("s_lshl_b32 s62, s56, 4"); a("s_add_u32 s72, s72, s62"); a("s_mul_i32 s72, s72, 1280"); a("s_add_u32 s73, s72, 2560")
    def sload(t):
        k=slot_of[t]
        if t[0] in "KV": kvload(t[0],t[1],k)
        elif DBG&8 and t[1]%8!=0: pass
        elif DBG&16: pass
        else:
            aa,cb=divmod(t[1],5)
            so="s72" if aa<2 else "s73"
            g.vmem(t, f"buffer_load_dwordx4 {r4(SL(k))}, v5, s[36:39], {so} offen offset:{(aa%2)*1280+cb*256}{ont}")
            a("s_nop 0")
    for i in range(32):
        if i==NPRE0:
            a("s_bitcmp1_b32 s82, 0"); a("s_cbranch_scc1 L_nobar0")
            a("v_mov_b32 v37, -1"); a("v_lshlrev_b32 v36, 2, v1"); a(f"ds_write_b32 v36, v37 offset:{LQ}"); a(f"ds_write_b32 v36, v37 offset:{LN_}")
            if STC: a("v_mov_b32 v36, 0"); a(f"ds_write_b32 v36, v36 offset:{LC}")
            a("s_waitcnt lgkmcnt(0)")
            a("s_barrier")
            masks(36,37)
            g.lab("L_nobar0")
        if i==RPOS:
            a("s_cmp_lg_u32 s3, 1"); a("s_cbranch_scc1 L_norp")
            a("v_mov_b32 v21, 0")
            a("s_cmp_ge_i32 s66, 0"); a("s_cbranch_scc1 L_norp")
            a(f"buffer_load_dword v20, v21, s[40:43], s101 offen sc1")
            g.lab("L_norp")
        if KO and i==NPRE0: wosetup()
        if FAST and i<NPRE0: g.vm.append(("K",i))
        else: sload(("K",i))
        if KO and i>=NPRE0+2 and (i-NPRE0-2)%6==0 and (i-NPRE0-2)//6<KO: sload(("O",(i-NPRE0-2)//6))
    a("s_cmp_eq_u32 s3, 1"); a("s_cbranch_scc1 L_poller")
    g.lab("L_extras")
    prio(1)
    a("v_mov_b32 v45, 0"); a("v_mov_b32 v23, 0"); a("v_mov_b32 v44, 0"); a("v_mov_b32 v22, 0")
    srd(32,8,64<<20); srd(36,12,4096*640*2)
    a("v_mul_u32_u24 v5, 5120, v3"); a("v_lshl_add_u32 v5, v4, 4, v5")
    a("s_lshl_b32 s72, s57, 7"); a("s_lshl_b32 s62, s56, 4"); a("s_add_u32 s72, s72, s62"); a("s_mul_i32 s72, s72, 1280"); a("s_add_u32 s73, s72, 2560")
    if DBG&8:
        a("s_lshl_b32 s72, s2, 3"); a("s_add_u32 s72, s72, s56"); a("s_mul_i32 s72, s72, 2560"); a("s_add_u32 s73, s72, 1024"); a("v_mov_b32 v5, v2")
    a("s_cmp_eq_u32 s3, 3"); a("s_cbranch_scc1 L_wdown" if not WDE else "s_cbranch_scc1 L_f1e")
    g.lab("L_exl")
    for t in R[:NEX]: sload(t)
    a("s_cmp_eq_u32 s3, 4"); a("s_cbranch_scc1 L_rest")
    g.lab("L_qw")
    stamp(1)
    a(f"v_lshlrev_b32 v36, 4, v4")
    a("s_mov_b32 s80, 0")
    g.lab("L_qwait")
    a(f"ds_read_b128 v[10:13], v36 offset:{LQ}")
    a(f"ds_read_b32 v40, v45 offset:{LN_}")
    a("s_waitcnt lgkmcnt(0)")
    ldsvalid([10,11,12,13],37)
    a("s_cbranch_scc1 L_qok")
    retry("L_qwait",2,0x100000,lds=True)
    g.lab("L_qok")
    stamp(2)
    prio(3)
    settags(40)
    a("s_mov_b32 s74, 0x%x"%SCALE); a("s_mov_b32 s75, 0xffff0000")
    P=28; TT=36
    for d in range(4):
        g.wait(("K",8*d+7))
        for j in range(4):
            for t in range(8):
                src2="0" if j==0 else f"v{P+t}"
                a(f"v_dot2_f32_bf16 v{P+t}, v{SL(8*d+t)+j}, v{10+j}, {src2}")
        for h in range(2):
            b=P+4*h
            a(f"v_add_f32_dpp v{TT+2*h}, v{b}, v{b} row_ror:8 row_mask:0xf bank_mask:0x3")
            a(f"v_add_f32_dpp v{TT+2*h}, v{b+1}, v{b+1} row_ror:8 row_mask:0xf bank_mask:0xc")
            a(f"v_add_f32_dpp v{TT+2*h+1}, v{b+2}, v{b+2} row_ror:8 row_mask:0xf bank_mask:0x3")
            a(f"v_add_f32_dpp v{TT+2*h+1}, v{b+3}, v{b+3} row_ror:8 row_mask:0xf bank_mask:0xc")
        for h in range(2):
            a(f"v_add_f32_dpp v{TT+4+h}, v{TT+2*h}, v{TT+2*h} row_shl:4 row_mask:0xf bank_mask:0x5")
            a(f"v_add_f32_dpp v{TT+4+h}, v{TT+2*h+1}, v{TT+2*h+1} row_shr:4 row_mask:0xf bank_mask:0xa")
        a("s_nop 0")
        for qp in ("[1,0,3,2]","[2,3,0,1]"):
            for h in range(2): a(f"v_add_f32_dpp v{TT+4+h}, v{TT+4+h}, v{TT+4+h} quad_perm:{qp} {DPPF}")
            a("s_nop 0")
        a(f"v_cvt_pk_bf16_f32 v{TT}, v{TT+4}, v{TT+5}")
        a(f"v_lshlrev_b32 v{TT+1}, 16, v{TT}"); a(f"v_and_b32 v{TT+2}, s75, v{TT}")
        a(f"v_mul_f32 v{TT+1}, s74, v{TT+1}"); a(f"v_mul_f32 v{TT+2}, s74, v{TT+2}")
        a(f"v_cvt_pk_bf16_f32 v{TT}, v{TT+1}, v{TT+2}")
        a(f"v_lshlrev_b32 v{14+2*d}, 16, v{TT}"); a(f"v_and_b32 v{15+2*d}, s75, v{TT}")
    a("v_max3_f32 v40, v14, v15, v16"); a("v_max3_f32 v41, v17, v18, v19"); a("v_max3_f32 v40, v40, v20, v21"); a("v_max_f32 v40, v40, v41")
    dpp("v_max_f32",40,"row_ror:4"); dpp("v_max_f32",40,"row_ror:8"); xrow("v_max_f32",40,41)
    a("s_mov_b32 s74, 0x%x"%LOG2E)
    a("v_mul_f32 v36, s74, v40")
    for k in range(8): a(f"v_fma_f32 v{14+k}, v{14+k}, s74, -v36")
    for k in range(8): a(f"v_exp_f32 v{14+k}, v{14+k}")
    a(f"v_mov_b32 v38, s{SN}")
    a("v_add_f32 v37, v14, v15"); a("v_add_f32 v40, v16, v17"); a("v_add_f32 v37, v37, v18"); a("v_add_f32 v40, v40, v19"); a("v_add_f32 v37, v37, v20"); a("v_add_f32 v40, v40, v21"); a("v_add_f32 v37, v37, v40")
    for k in range(8): a(f"v_cvt_pk_bf16_f32 v{14+k}, v{14+k}, v{14+k}")
    dpp("v_add_f32",37,"row_ror:4",nop=False); dpp("v_add_f32",37,"row_ror:8"); xrow("v_add_f32",37,41)
    a(f"v_mov_b32 v39, s{SN}")
    if STC:
        a("s_lshl_b32 s61, s56, 3"); a("v_mov_b32 v40, s61"); a("v_mov_b32 v41, 1")
        a("s_mov_b64 exec, 1")
        a(f"ds_write_b64 v40, v[36:37] offset:{LS}")
        a(f"ds_add_rtn_u32 v41, v45, v41 offset:{LC}")
        a("s_mov_b64 exec, -1")
        a("v_and_b32 v40, 7, v1"); a("v_lshlrev_b32 v40, 3, v40")
        a("s_waitcnt lgkmcnt(0)")
        a("v_readfirstlane_b32 s61, v41")
        a("s_nop 0")
        a("s_cmp_lg_u32 s61, 7"); a("s_cbranch_scc1 L_nost")
        a(f"ds_read_b64 v[42:43], v40 offset:{LS}")
        a("s_lshl_b32 s61, s59, 4"); a(f"s_mul_i32 s62, s81, {RSTR}"); a("s_add_u32 s61, s61, s62"); a(f"s_add_u32 s61, s61, {RST}")
        a("s_waitcnt lgkmcnt(0)")
        a("v_mov_b32 v36, v42")
        for ctrl in ("quad_perm:[1,0,3,2]","quad_perm:[2,3,0,1]","row_half_mirror"): dpp("v_max_f32",36,ctrl)
        a("v_sub_f32 v37, v42, v36"); a("v_exp_f32 v37, v37"); a("s_nop 0"); a("v_mul_f32 v37, v37, v43")
        for ctrl in ("quad_perm:[1,0,3,2]","quad_perm:[2,3,0,1]","row_half_mirror"): dpp("v_add_f32",37,ctrl)
        a("s_mov_b64 exec, 1")
        a("buffer_store_dwordx4 v[36:39], v45, s[40:43], s61 offen sc1")
        a("s_mov_b64 exec, -1")
        g.lab("L_nost")
    else:
        a("s_lshl_b32 s61, s59, 3"); a("s_add_u32 s61, s61, s56"); a("s_lshl_b32 s61, s61, 4"); a(f"s_mul_i32 s62, s81, {RSTR}"); a("s_add_u32 s61, s61, s62"); a(f"s_add_u32 s61, s61, {RST}")
        a("s_mov_b64 exec, 1")
        a("buffer_store_dwordx4 v[36:39], v45, s[40:43], s61 offen sc1")
        a("s_mov_b64 exec, -1")
    stamp(3)
    a("s_cmp_eq_u32 s3, 3"); a("s_cbranch_scc1 L_ffn2")
    g.lab("L_rest")
    prio(0)
    if SP3:
        a("s_bitcmp1_b32 s2, 0"); a("s_cbranch_scc1 L_nsp"); a("s_cmp_lg_u32 s69, 3"); a("s_cbranch_scc1 L_nsp"); prio(1); g.lab("L_nsp")
    for i,t in enumerate(R[NEX:]):
        if SP3 and i==SP3: prio(0)
        sload(t)
    a("v_lshlrev_b32 v36, 5, v4"); a("v_lshl_add_u32 v36, v3, 4, v36")
    a(f"s_mul_i32 s61, s56, {LO_STR}"); a("v_add_u32 v41, s61, v36")
    a("v_and_b32 v37, 0x1f0, v2")
    a(f"s_mul_i32 s61, s56, {LY_STR}"); a("v_add_u32 v42, s61, v37")
    a("v_and_b32 v36, 7, v1"); a(f"v_mul_u32_u24 v40, {LO_STR}, v36"); a("v_lshl_add_u32 v40, v3, 4, v40"); a("s_lshl_b32 s61, s56, 6"); a("v_add_u32 v40, s61, v40")
    if STC: a("v_lshlrev_b32 v43, 2, v36")
    else: a("s_lshl_b32 s61, s59, 5"); a("v_lshl_add_u32 v43, v36, 2, s61")
    a("s_mul_i32 s76, s59, 2560"); a(f"s_mul_i32 s62, s81, {RSTR}"); a("s_add_u32 s76, s76, s62"); a(f"s_add_u32 s76, s76, {RY}")
    a("s_cmp_eq_u32 s3, 5"); a("s_cbranch_scc1 L_c1")
    a("s_cmp_eq_u32 s3, 2"); a("s_cbranch_scc1 L_s1")
    if YW:
        a("s_cmp_lg_u32 s56, 1"); a("s_cbranch_scc1 L_vphase")
        a("v_lshlrev_b32 v36, 6, v1"); a("s_mov_b32 exec_hi, 0xff")
        a("buffer_load_dword v10, v36, s[40:43], s76 offen%s"%(" sc1" if YW==1 else ""))
        a("s_mov_b32 exec_hi, -1")
    g.lab("L_vphase")
    beta=[0,2,1,3]
    def buildA(i):
        A=28+4*(i%2)
        for r in range(4):
            a(f"v_and_b32_dpp v{A+r}, v{14+i//4}, v{6+r} row_newbcast:{4*beta[i%4]} {DPPF}")
    buildA(0)
    for i in range(32):
        if i<31: buildA(i+1)
        g.wait(("V",i))
        A=28+4*(i%2)
        C="0" if i==0 else "v[24:27]"
        a(f"v_mfma_f32_16x16x32_bf16 v[24:27], {r4(A)}, {r4(SL(slot_of[('V',i)]))}, {C}")
    a("s_mov_b64 exec, 0xffffffff")
    a("s_nop 6")
    a(f"ds_write_b128 v41, v[24:27] offset:{LO}")
    a("s_mov_b64 exec, -1")
    stamp(4)
    a("s_cmp_eq_u32 s3, 2"); a("s_cbranch_scc1 L_w2stats")
    a("s_cmp_eq_u32 s3, 5"); a("s_cbranch_scc1 L_w3pre")
    g.lab("L_bar2")
    a("v_lshlrev_b32 v34, 4, v0")
    if YT:
        a("s_mul_i32 s61, s58, 40"); a("v_lshrrev_b32 v35, 2, v0"); a("v_add_u32 v35, s61, v35")
        a("v_lshrrev_b32 v31, 6, v35"); a("v_and_b32 v35, 63, v35"); a(f"v_mul_u32_u24 v35, {RSTR}, v35"); a("v_lshl_add_u32 v35, v31, 13, v35")
        a("v_and_b32 v31, 48, v34"); a("v_add_u32 v35, v35, v31")
        a("s_lshl_b32 s76, s57, 2"); a("s_add_u32 s76, s76, s59"); a("s_lshl_b32 s76, s76, 6"); a(f"s_add_u32 s76, s76, {RY}")
    def flagstore():
        a("s_cmp_lg_u32 s56, 7"); a("s_cbranch_scc1 L_nofl")
        if FPOS<2: a("s_mov_b64 exec, 1")
        a("buffer_store_dword v33, v32, s[40:43], s74 offen sc1")
        if FPOS<2: a("s_mov_b64 exec, -1")
        g.lab("L_nofl")
    if FIN>=2:
        a(f"v_mov_b32 v33, s{SN}"); a("v_lshlrev_b32 v32, 24, v1")
        a("s_lshl_b32 s74, s59, 7"); a(f"s_mul_i32 s62, s81, {RSTR}"); a("s_add_u32 s74, s74, s62"); a(f"s_add_u32 s74, s74, {RFL}")
        a("s_waitcnt vmcnt(0)")
    a("s_waitcnt lgkmcnt(0)")
    a("s_barrier")
    stamp(5)
    a(f"ds_read_b128 v[36:39], v40 offset:{LO}")
    a(f"ds_read_b32 v44, v43 offset:{LF}")
    if FIN>=2:
        if FPOS==0: flagstore()
        a("s_waitcnt lgkmcnt(0)")
    else: a("s_waitcnt vmcnt(0) lgkmcnt(0)")
    for k in range(4): a(f"v_mul_f32 v{36+k}, v44, v{36+k}")
    for ctrl in ("quad_perm:[1,0,3,2]","quad_perm:[2,3,0,1]","row_half_mirror"):
        for k in range(4): a(f"v_add_f32_dpp v{36+k}, v{36+k}, v{36+k} {ctrl} {DPPF}")
    for k in range(4): a(f"v_cvt_pk_bf16_f32 v{36+k}, v{36+k}, v{36+k}")
    vslots=sorted(slot_of[("V",i)] for i in range(32))
    YAs=vslots[0:5]; ABs=vslots[5:9]
    def AND(k,r): a(f"v_and_b32 v{SL(ABs[k])+r}, v{36+k}, v{6+r}")
    def M(cb,aa):
        C="0" if aa==0 else r4(SL(YAs[cb]))
        a(f"v_mfma_f32_16x16x32_bf16 {r4(SL(YAs[cb]))}, {r4(SL(ABs[aa]))}, {r4(SL(slot_of[('O',aa*5+cb)]))}, {C}")
    def W(cb): a(f"ds_write_b128 v42, {r4(SL(YAs[cb]))} offset:{LY+512*cb}")
    for r in range(4): AND(0,r)
    rest=[(k,r) for k in range(1,4) for r in range(4)]
    AND(*rest.pop(0)); AND(*rest.pop(0))
    for cb in range(5):
        M(cb,0)
        for _ in range(3 if cb<2 else 2):
            if rest: AND(*rest.pop(0))
    a("s_nop 0")
    for cb in range(5):
        if FIN>=2 and FPOS==2+cb: flagstore()
        for aa in range(1,4): M(cb,aa)
        if cb>=2: W(cb-2); a("s_nop 0")
        else: a("s_nop 1")
    a("s_nop 0"); W(3); a("s_nop 3"); W(4)
    if FIN>=2 and FPOS==1: flagstore()
    a("s_waitcnt lgkmcnt(0)")
    a("s_barrier")
    stamp(6)
    a("s_cmp_ge_u32 s56, 3"); a("s_cbranch_scc1 L_fin")
    a("v_cmp_gt_u32 vcc, 160, v0"); a("s_and_saveexec_b64 s[78:79], vcc")
    for w in range(8): a(f"ds_read_b128 {r4(SL(w))}, v34 offset:{LY+LY_STR*w}")
    a("s_waitcnt lgkmcnt(0)" if stamps else "s_waitcnt lgkmcnt(4)")
    pkadd(SL(0),SL(1)); pkadd(SL(2),SL(3)); pkadd(SL(0),SL(2))
    a("s_waitcnt lgkmcnt(0)")
    pkadd(SL(4),SL(5)); pkadd(SL(6),SL(7)); pkadd(SL(4),SL(6)); pkadd(SL(0),SL(4))
    tag(SL(0))
    a(f"buffer_store_dwordx4 {r4(SL(0))}, v{35 if YT else 34}, s[40:43], s76 offen {['sc1','sc0 sc1','sc1 nt','sc0 sc1 nt'][PS]}")
    if stamps==3: stamp(3,3); a("s_waitcnt vmcnt(0)"); stamp(4,3)
    a("s_mov_b64 exec, -1")
    a("s_branch L_done")
    g.lab("L_fin")
    if HELP: a("s_cmp_eq_u32 s3, 6"); a("s_cbranch_scc1 L_help")
    a("s_cmp_lg_u32 s3, 5"); a("s_cbranch_scc1 L_done")
    a("s_mov_b32 s80, 0")
    srd(52,22,2560)
    if FIN==2:
        a("v_lshrrev_b32 v36, 2, v1"); a(f"v_mul_u32_u24 v36, {RSTR}, v36"); a("v_and_b32 v37, 3, v1"); a("v_lshl_add_u32 v36, v37, 7, v36")
        a("s_cmp_ge_u32 s83, 40"); a(f"s_cselect_b32 s61, {32*RSTR}, 0"); a(f"s_add_u32 s61, s61, {RFL}"); a(f"s_add_u32 s62, s61, {16*RSTR}")
        g.lab("L_fl_poll")
        a("buffer_load_dword v37, v36, s[40:43], s61 offen sc1")
        a("buffer_load_dword v38, v36, s[40:43], s62 offen sc1")
        a("s_waitcnt vmcnt(0)")
        a(f"v_cmp_ne_u32 vcc, s{SN}, v37"); a(f"v_cmp_ne_u32 s[78:79], s{SN}, v38"); a("s_or_b64 vcc, vcc, s[78:79]")
        a("s_cbranch_scc0 L_fl_ok")
        retry("L_fl_poll",FSL)
        g.lab("L_fl_ok")
        a("s_mov_b32 s80, 0")
        if FDEL: a(f"s_sleep {FDEL}")
    if FIN==3:
        a("v_lshlrev_b32 v36, 7, v1")
        a("s_cmp_ge_u32 s83, 40"); a("s_cselect_b32 s61, 16384, 0"); a(f"s_add_u32 s61, s61, {FL_OFF}"); a("s_add_u32 s62, s61, 8192")
        SO=[63,64,65,66,67,68,69,70]
        for i in range(1,8): a(f"s_add_u32 s{SO[i]}, s{SO[i-1]}, 40960")
        a("s_mov_b64 s[28:29], -1"); a("s_mov_b64 s[30:31], -1"); a("s_mov_b64 s[32:33], -1"); a("s_mov_b64 s[34:35], -1"); a("s_mov_b64 s[36:37], 0"); a("s_mov_b64 s[38:39], 0")
        a("s_mov_b32 s71, 0")
        g.lab("L_fl_poll")
        stamp(3,3)
        for i in range(8):
            a(f"s_bfe_u32 s72, s{28+i//2}, {(16<<16)|(16*(i%2)):#x}"); a(f"s_cbranch_scc1 L_fg{i}")
            a(f"buffer_load_dwordx4 {r4(SL(i))}, v45, s[40:43], s{SO[i]} offen sc1")
            a(f"s_bitset1_b32 s{36+i//2}, {16*(i%2)}"); a("s_add_u32 s71, s71, 1")
            g.lab(f"L_fg{i}")
        a("s_cmp_eq_u32 s71, 8"); a("s_cbranch_scc1 L_fin_chk")
        a("buffer_load_dword v37, v36, s[40:43], s61 offen sc1")
        a("buffer_load_dword v38, v36, s[40:43], s62 offen sc1")
        if FDEL:
            a("s_or_b64 s[28:29], s[32:33], s[36:37]"); a("s_or_b64 s[30:31], s[34:35], s[38:39]")
        a("s_waitcnt vmcnt(0)")
        a(f"v_cmp_ne_u32 s[32:33], s{SN}, v37"); a(f"v_cmp_ne_u32 s[34:35], s{SN}, v38")
        if not FDEL:
            a("s_or_b64 s[28:29], s[32:33], s[36:37]"); a("s_or_b64 s[30:31], s[34:35], s[38:39]")
        a("s_add_u32 s80, s80, 1"); a("s_cmp_lt_u32 s80, 0x10000"); a("s_cbranch_scc1 L_fl_poll")
    if FIN in (0,2,3):
        g.lab("L_fin_poll")
        stamp(3,3)
        a("s_mov_b32 s62, s63")
        for i in range(8):
            a(f"buffer_load_dwordx4 {r4(SL(i))}, v45, s[40:43], s62 offen {['sc1','sc0 sc1','sc1 nt','sc0 sc1 nt'][PL]}")
            if i<7: a(f"s_add_u32 s62, s62, {1024 if YT else 4*RSTR}")
        g.lab("L_fin_chk")
        if PIPE:
            for i in range(8):
                b=SL(i)
                a(f"s_waitcnt vmcnt({7-i})")
                for k in range(4): a(f"v_xor_b32 v{b+k}, s{T[k]}, v{b+k}")
                if i==0: a(f"v_or3_b32 v36, v{b}, v{b+1}, v{b+2}"); a(f"v_or_b32 v36, v36, v{b+3}")
                else:
                    a(f"v_or3_b32 v36, v36, v{b}, v{b+1}"); a(f"v_or3_b32 v36, v36, v{b+2}, v{b+3}")
                    pkadd(SL(0),b)
            a("v_and_b32 v36, 15, v36"); a("v_cmp_ne_u32 vcc, 0, v36"); a("s_cmp_eq_u64 vcc, 0")
        else:
            a("s_waitcnt vmcnt(0)")
            stamp(4,3)
            untag([SL(i) for i in range(8)],36)
        a("s_cbranch_scc1 L_fin_ok")
        retry("L_fin_poll",SLEEPF)
    else:
        MK=[28,30,32,34,36,38,4,6]
        SO=[63,64,65,66,67,68,69,70]
        for i in range(8):
            a(f"s_mov_b64 s[{MK[i]}:{MK[i]+1}], -1")
            if i: a(f"s_add_u32 s{SO[i]}, s{SO[i-1]}, 40960")
        g.lab("L_fin_poll")
        stamp(3,3)
        for i in range(8):
            a(f"s_mov_b64 exec, s[{MK[i]}:{MK[i]+1}]"); a(f"s_cbranch_execz L_fa{i}")
            a(f"buffer_load_dwordx4 {r4(SL(i))}, v45, s[40:43], s{SO[i]} offen sc1")
            g.lab(f"L_fa{i}")
        a("s_mov_b32 s61, 0")
        a("s_waitcnt vmcnt(0)")
        stamp(4,3)
        for i in range(8):
            b=SL(i)
            a(f"s_mov_b64 exec, s[{MK[i]}:{MK[i]+1}]"); a(f"s_cbranch_execz L_fb{i}")
            for k in range(4): a(f"v_xor_b32 v{b+k}, s{T[k]}, v{b+k}")
            a(f"v_or3_b32 v36, v{b}, v{b+1}, v{b+2}"); a(f"v_or_b32 v36, v36, v{b+3}"); a("v_and_b32 v36, 15, v36")
            a(f"v_cmp_ne_u32 s[{MK[i]}:{MK[i]+1}], 0, v36")
            a(f"s_bcnt1_i32_b64 s62, s[{MK[i]}:{MK[i]+1}]"); a("s_add_u32 s61, s61, s62")
            g.lab(f"L_fb{i}")
        a("s_mov_b64 exec, -1")
        a("s_cmp_eq_u32 s61, 0"); a("s_cbranch_scc1 L_fin_ok")
        if not DBG&1:
            a(f"s_cmp_lt_u32 s61, {4*FTH}"); a("s_cbranch_scc1 L_fc"); a(f"s_sleep {SLEEPG}")
            g.lab("L_fc")
            a("s_add_u32 s80, s80, 1"); a("s_cmp_lt_u32 s80, 0x10000"); a("s_cbranch_scc1 L_fin_poll")
    g.lab("L_fin_ok")
    if not PIPE:
        pkadd(SL(0),SL(1)); pkadd(SL(2),SL(3)); pkadd(SL(4),SL(5)); pkadd(SL(6),SL(7)); pkadd(SL(0),SL(2)); pkadd(SL(4),SL(6)); pkadd(SL(0),SL(4))
    scatter_reduce(SL(0),38,36,37)
    a("v_cvt_pk_bf16_f32 v38, v38, v38"); a("v_lshlrev_b32 v38, 16, v38"); a("v_add_f32 v38, v46, v38")
    a("v_cvt_pk_bf16_f32 v38, v38, v38"); a("v_lshlrev_b32 v38, 16, v38"); a("v_add_f32 v38, v47, v38")
    a("v_cvt_pk_bf16_f32 v38, v38, v38")
    a("s_mov_b64 exec, 0xffff")
    a("buffer_store_short v38, v23, s[52:55], 0 offen"+["", " sc1", " sc0 sc1", " nt"][OSC])
    a("s_cmp_lg_u32 s83, 40"); a("s_cbranch_scc1 L_noep")
    a("s_mov_b64 exec, 1")
    a(f"buffer_store_dword v33, v32, s[40:43], s101 offen sc1")
    g.lab("L_noep")
    a("s_mov_b64 exec, -1")
    g.lab("L_done")
    if PAD:
        g.lab("L_pad")
        a("s_memrealtime s[98:99]"); a("s_waitcnt lgkmcnt(0)"); a("s_sub_u32 s98, s98, s100"); a(f"s_cmp_lt_u32 s98, {PAD*100}"); a("s_cbranch_scc1 L_pad")
    if stamps:
        stamp(7)
        a("s_waitcnt lgkmcnt(0)")
        a(f"s_add_u32 s52, s26, {STAMP_OFF}"); a("s_addc_u32 s53, s27, 0"); a("s_mov_b32 s54, 0x100000"); a("s_mov_b32 s55, 0x20000")
        for k in range(8): a(f"v_mov_b32 v{48+k}, s{84+2*k}")
        if stamps==3: a("v_mov_b32 v49, s80")
        a("s_lshl_b32 s61, s2, 3"); a("s_add_u32 s61, s61, s56"); a("s_lshl_b32 s61, s61, 5")
        a("v_mov_b32 v36, 0"); a("s_mov_b64 exec, 1")
        a("buffer_store_dwordx4 v[48:51], v36, s[52:55], s61 offen"); a("buffer_store_dwordx4 v[52:55], v36, s[52:55], s61 offen offset:16")
    g.lab("L_end")
    a("s_endpgm")

    if HELP:
        g.lab("L_help")
        a("s_cmp_ge_u32 s83, 40"); a("s_cselect_b32 s61, 1, 0"); a("s_mul_i32 s62, s61, 40"); a("s_sub_u32 s62, s83, s62")
        a("s_mul_i32 s63, s61, 327680"); a("s_lshl_b32 s74, s62, 6"); a("s_add_u32 s63, s63, s74"); a(f"s_add_u32 s63, s63, {Y_OFF}"); a("s_add_u32 s64, s63, 163840")
        a("v_mul_u32_u24 v45, 2560, v1"); a("v_lshlrev_b32 v36, 7, v1")
        a("s_lshl_b32 s61, s61, 14"); a(f"s_add_u32 s61, s61, {FL_OFF}"); a("s_add_u32 s62, s61, 8192")
        for k in (28,30,32,34,36,38): a(f"s_mov_b64 s[{k}:{k+1}], 0")
        a("s_mov_b32 s80, 0")
        g.lab("L_hp")
        a("buffer_load_dword v37, v36, s[40:43], s61 offen sc1")
        a("buffer_load_dword v38, v36, s[40:43], s62 offen sc1")
        for h in range(2):
            a(f"s_mov_b64 exec, s[{28+2*h}:{29+2*h}]"); a(f"s_cbranch_execz L_hs{h}")
            a(f"buffer_load_dword v{39+h}, v45, s[40:43], s{63+h} offen sc1")
            g.lab(f"L_hs{h}")
            a(f"s_or_b64 s[{36+2*h}:{37+2*h}], s[{36+2*h}:{37+2*h}], s[{28+2*h}:{29+2*h}]")
            a(f"s_andn2_b64 s[{28+2*h}:{29+2*h}], s[{32+2*h}:{33+2*h}], s[{36+2*h}:{37+2*h}]")
        a("s_mov_b64 exec, -1")
        a("s_waitcnt vmcnt(0)")
        a(f"v_cmp_eq_u32 s[32:33], s{SN}, v37"); a(f"v_cmp_eq_u32 s[34:35], s{SN}, v38")
        a("s_and_b64 s[78:79], s[32:33], s[34:35]"); a("s_cmp_eq_u64 s[78:79], -1"); a("s_cbranch_scc1 L_done")
        a(f"s_sleep {HELP}")
        a("s_add_u32 s80, s80, 1"); a("s_cmp_lt_u32 s80, 0x4000"); a("s_cbranch_scc1 L_hp")
        a("s_branch L_done")

    g.lab("L_s1")
    if STC: a("v_and_b32 v44, 0x30, v2"); a("v_lshlrev_b32 v45, 1, v43")
    else: a("v_and_b32 v44, 0x1f0, v2"); a("v_lshrrev_b32 v45, 2, v44")
    a(f"s_mul_i32 s77, s81, {RSTR}"); a(f"s_add_u32 s77, s77, {RST}")
    a("buffer_load_dwordx4 v[10:13], v44, s[40:43], s77 offen sc1")
    a("s_branch L_vphase")
    g.lab("L_w2stats")
    prio(3)
    a("s_mov_b32 s80, 0")
    a("s_branch L_w2_chk")
    g.lab("L_w2_poll")
    a("buffer_load_dwordx4 v[10:13], v44, s[40:43], s77 offen sc1")
    g.lab("L_w2_chk")
    a("s_waitcnt vmcnt(0)")
    a(f"v_cmp_ne_u32 vcc, s{SN}, v12"); a(f"v_cmp_ne_u32 s[78:79], s{SN}, v13"); a("s_or_b64 vcc, vcc, s[78:79]")
    a("s_cbranch_scc0 L_w2_ok")
    retry("L_w2_poll",8)
    g.lab("L_w2_ok")
    if STC:
        a(f"ds_read_b32 v39, v45 offset:{LS}")
        a("v_mov_b32 v38, v10")
        for ctrl in ("quad_perm:[1,0,3,2]","quad_perm:[2,3,0,1]"): dpp("v_max_f32",38,ctrl)
        a("v_sub_f32 v36, v10, v38"); a("v_exp_f32 v36, v36"); a("s_nop 0"); a("v_mul_f32 v37, v36, v11")
        for ctrl in ("quad_perm:[1,0,3,2]","quad_perm:[2,3,0,1]"): dpp("v_add_f32",37,ctrl)
        a("v_rcp_f32 v37, v37")
        a("s_waitcnt lgkmcnt(0)")
        a("v_sub_f32 v36, v39, v38"); a("v_exp_f32 v36, v36"); a("s_nop 0"); a("v_mul_f32 v36, v36, v37")
        a(f"ds_write_b32 v43, v36 offset:{LF}")
    else:
        a("v_mov_b32 v38, v10")
        for ctrl in ("quad_perm:[1,0,3,2]","quad_perm:[2,3,0,1]","row_half_mirror","row_mirror"): dpp("v_max_f32",38,ctrl)
        xrow("v_max_f32",38,39,steps=(16,))
        a("v_sub_f32 v36, v10, v38"); a("v_exp_f32 v36, v36"); a("s_nop 0"); a("v_mul_f32 v37, v36, v11")
        for ctrl in ("quad_perm:[1,0,3,2]","quad_perm:[2,3,0,1]","row_half_mirror","row_mirror"): dpp("v_add_f32",37,ctrl)
        xrow("v_add_f32",37,39,steps=(16,))
        a("v_rcp_f32 v37, v37"); a("s_nop 0"); a("v_mul_f32 v36, v36, v37")
        a(f"ds_write_b32 v45, v36 offset:{LF}")
    a("s_branch L_bar2")

    g.lab("L_c1")
    a("s_cmp_ge_u32 s83, 40"); a("s_cselect_b32 s61, 1, 0"); a("s_mul_i32 s62, s61, 40"); a("s_sub_u32 s62, s83, s62")
    a(f"s_mul_i32 s63, s61, {RSTR*32}"); a("s_lshl_b32 s74, s62, 6"); a("s_add_u32 s63, s63, s74"); a(f"s_add_u32 s63, s63, {RY}")
    a("v_lshrrev_b32 v36, 2, v1"); a("v_and_b32 v37, 3, v1")
    a("v_and_b32 v45, 3, v36"); a("v_mul_u32_u24 v45, 2560, v45"); a(f"v_mul_u32_u24 v38, {RSTR}, v3"); a("v_add_u32 v45, v38, v45"); a("v_lshl_add_u32 v45, v37, 4, v45")
    if YT:
        a("v_mov_b32 v45, v2")
        a("s_and_b32 s63, s83, 63"); a(f"s_mul_i32 s63, s63, {RSTR}"); a("s_lshr_b32 s74, s83, 6"); a("s_lshl_b32 s74, s74, 13"); a("s_add_u32 s63, s63, s74"); a(f"s_add_u32 s63, s63, {RY}")
    a(f"v_mul_u32_u24 v44, {RSTR*2}, v36"); a("v_lshl_add_u32 v44, v37, 4, v44")
    a("s_lshr_b32 s75, s62, 3"); a("s_lshl_b32 s75, s75, 10"); a("s_lshl_b32 s74, s61, 9"); a("s_add_u32 s75, s75, s74"); a("s_and_b32 s74, s62, 7"); a("s_lshl_b32 s74, s74, 6"); a("s_add_u32 s75, s75, s74"); a(f"s_add_u32 s75, s75, {RF2}")
    a(f"s_add_u32 s77, s75, {32*RSTR}")
    a("v_and_b32 v38, 1, v36"); a("v_lshlrev_b32 v38, 1, v38"); a("v_bfe_u32 v39, v36, 1, 1"); a("v_or_b32 v38, v38, v39")
    a("v_lshl_add_u32 v38, v37, 3, v38"); a("v_lshlrev_b32 v38, 1, v38")
    a("s_mul_i32 s61, s61, 1280"); a("s_lshr_b32 s74, s62, 3"); a("s_lshl_b32 s74, s74, 8"); a("s_add_u32 s61, s61, s74")
    a("s_and_b32 s74, s62, 3"); a("s_lshl_b32 s74, s74, 6"); a("s_add_u32 s61, s61, s74")
    a("s_and_b32 s74, s62, 4"); a("s_lshl_b32 s74, s74, 1"); a("s_add_u32 s61, s61, s74"); a("v_add_u32 v23, s61, v38")
    srd(48,4,2560)
    a("buffer_load_ushort v46, v23, s[48:51], 0 offen")
    def f2loads():
        for k in range(4): a(f"v_mov_b32 v{36+k}, s{T[k]}")
        a("buffer_load_dwordx4 v[10:13], v44, s[40:43], s75 offen sc1")
        a("s_mov_b32 exec_hi, 0xfff")
        a("buffer_load_dwordx4 v[36:39], v44, s[40:43], s77 offen sc1")
        a("s_mov_b32 exec_hi, -1")
    f2loads()
    a("s_branch L_vphase")
    g.lab("L_w3pre")
    prio(3)
    a("s_mov_b32 s80, 0")
    a("s_branch L_w3_chk")
    g.lab("L_w3_poll")
    f2loads()
    g.lab("L_w3_chk")
    a("s_waitcnt vmcnt(0)")
    untag([10,36],28)
    a("s_cbranch_scc1 L_w3_ok")
    retry("L_w3_poll",16)
    g.lab("L_w3_ok")
    pkadd(10,36)
    scatter_reduce(10,47,28,29)
    a("v_cvt_pk_bf16_f32 v47, v47, v47"); a("v_lshlrev_b32 v47, 16, v47"); a("v_lshlrev_b32 v46, 16, v46")
    a("s_branch L_bar2")

    g.lab("L_unit2")
    masks(36,37)
    if UNEV: a("s_cmp_eq_u32 s70, 0"); a("s_cbranch_scc1 L_pref")
    a("s_cmp_lg_u32 s56, 5"); a("s_cbranch_scc1 L_unit3")
    a("s_mov_b32 s61, 0xffff0000")
    if UNEV: a("v_mov_b32 v14, 0"); a("v_lshlrev_b32 v15, 2, v1"); a(f"ds_write_b32 v15, v14 offset:{LX+2560}")
    a(f"s_waitcnt vmcnt({10 if ASYM else 8})")
    stamp(3,2)
    U=SL(12); X=24
    for k in range(10):
        a(f"v_lshlrev_b32 v{U+2*k}, 16, v{X+k}"); a(f"v_and_b32 v{U+2*k+1}, s61, v{X+k}")
    a(f"v_add_f32 v14, v{U}, v{U+1}"); a(f"v_add_f32 v15, v{U+2}, v{U+3}")
    for k in range(4,20,2):
        a(f"v_add_f32 v14, v14, v{U+k}"); a(f"v_add_f32 v15, v15, v{U+k+1}")
    a("v_add_f32 v14, v14, v15")
    def red32(v,t):
        for ctrl in ("quad_perm:[1,0,3,2]","quad_perm:[2,3,0,1]","row_half_mirror","row_mirror"): dpp("v_add_f32",v,ctrl)
        xrow("v_add_f32",v,t,steps=(16,))
    red32(14,15)
    a("s_mov_b32 s62, 0x3acccccd")
    a("v_mul_f32 v14, s62, v14")
    for k in range(20): a(f"v_sub_f32 v{U+20+k}, v{U+k}, v14")
    a(f"v_mul_f32 v16, v{U+20}, v{U+20}"); a(f"v_mul_f32 v17, v{U+21}, v{U+21}")
    for k in range(2,20,2):
        a(f"v_fmac_f32 v16, v{U+20+k}, v{U+20+k}"); a(f"v_fmac_f32 v17, v{U+21+k}, v{U+21+k}")
    a("v_add_f32 v16, v16, v17")
    red32(16,15)
    a("v_mul_f32 v16, s62, v16")
    a("v_cvt_pk_bf16_f32 v15, v14, v16"); a("v_lshlrev_b32 v14, 16, v15"); a("v_and_b32 v16, s61, v15")
    a("v_add_f32 v16, 0x3727c5ac, v16"); a("v_cvt_pk_bf16_f32 v16, v16, v16"); a("v_and_b32 v16, s61, v16")
    a("v_sqrt_f32 v16, v16"); a("s_nop 0"); a("v_cvt_pk_bf16_f32 v16, v16, v16"); a("v_and_b32 v16, s61, v16")
    a("v_rcp_f32 v16, v16")
    for k in range(20): a(f"v_sub_f32 v{U+k}, v{U+k}, v14")
    for k in range(10): a(f"v_cvt_pk_bf16_f32 v{X+k}, v{U+2*k}, v{U+2*k+1}")
    for k in range(10):
        a(f"v_lshlrev_b32 v{U+2*k}, 16, v{X+k}"); a(f"v_and_b32 v{U+2*k+1}, s61, v{X+k}")
    for k in range(20): a(f"v_mul_f32 v{U+k}, v{U+k}, v16")
    for k in range(10): a(f"v_cvt_pk_bf16_f32 v{X+k}, v{U+2*k}, v{U+2*k+1}")
    for k in range(10): a(f"v_min_u32 v{X+k}, -2, v{X+k}")
    for k in range(5): a(f"ds_write_b64 v12, v[{X+2*k}:{X+2*k+1}] offset:{LX+256*k}")
    stamp(4,2)
    g.lab("L_unit3")
    a("v_bfe_u32 v36, v1, 3, 1"); a("v_mul_u32_u24 v36, 1280, v36"); a("v_lshl_add_u32 v37, v22, 1, v36")
    a("s_mov_b32 s61, 0x01000100"); a("s_mov_b32 s62, 0x03020302")
    a("s_waitcnt vmcnt(0)")
    a("s_cmp_lg_u32 s56, 4"); a("s_cbranch_scc1 L_u2a")
    stamp(3,2)
    a("v_mov_b32 v21, 0")
    a("v_add_u32 v20, 1, v20"); a("v_and_b32 v20, 0x7fffffff, v20")
    a(f"ds_write_b32 v21, v20 offset:{LN_}")
    settags(20)
    g.lab("L_u2a")
    a("s_mov_b32 s80, 0")
    g.lab("L_u2x")
    for k in range(NU//2): a(f"ds_read_b32 v{14+k}, v37 offset:{LX+4*k}")
    a("s_waitcnt lgkmcnt(0)")
    ldsvalid([14+k for k in range(NU//2)],36)
    a("s_cbranch_scc1 L_u2b")
    retry("L_u2x",1,0x100000,lds=True)
    g.lab("L_u2b")
    def buildX(src,i):
        A=28+4*(i%2)
        a(f"v_perm_b32 v36, v{src+i//2}, v{src+i//2}, s{61+i%2}")
        for r in range(4): a(f"v_and_b32 v{A+r}, v36, v{6+r}")
    buildX(14,0)
    for i in range(NU):
        if i==8 and not ASYM: a("s_cmp_eq_u32 s70, 8"); a("s_cbranch_scc1 L_u8")
        if UNEV and i in (10,12): a(f"s_cmp_eq_u32 s70, {i}"); a("s_cbranch_scc1 L_u8")
        if i<NU-1: buildX(14,i+1)
        else: a("s_nop 0")
        C="0" if i==0 else "v[40:43]"
        a(f"v_mfma_f32_16x16x32_bf16 v[40:43], {r4(28+4*(i%2))}, {r4(SL(32+i))}, {C}")
    g.lab("L_u8")
    a("s_cmp_eq_u32 s56, 4"); a("s_cbranch_scc1 L_u2c")
    a("s_nop 5")
    for k in range(4): a(f"v_min_u32 v{40+k}, -2, v{40+k}")
    a(f"ds_write_b128 v13, v[40:43] offset:{LU}")
    a("s_branch L_pref")
    g.lab("L_u2c")
    a("s_nop 3")
    a("s_mov_b32 s80, 0")
    g.lab("L_u2w")
    for k in range(3): a(f"ds_read_b128 {r4(28+4*k)}, v2 offset:{LU+1024*(k+1)}")
    a("s_waitcnt lgkmcnt(0)")
    ldsvalid(list(range(28,40)),44)
    a("s_cbranch_scc1 L_u2ok")
    retry("L_u2w",1,0x100000,lds=True)
    g.lab("L_u2ok")
    pkadd(40,28); pkadd(32,36); pkadd(40,32)
    stamp(4,2)
    tag(40)
    a("buffer_store_dwordx4 v[40:43], v2, s[40:43], s75 offen sc1")
    a("s_branch L_pref")

    g.lab("L_poller")
    prio(3)
    stamp(3,2)
    a("s_cmp_ge_i32 s66, 0"); a("s_cbranch_scc1 L_pn")
    a(f"s_waitcnt vmcnt({32-RPOS})")
    a("v_add_u32 v20, 1, v20"); a("v_and_b32 v20, 0x7fffffff, v20")
    a(f"ds_write_b32 v21, v20 offset:{LN_}")
    g.lab("L_pn")
    a("s_mov_b32 s80, 0")
    g.lab("L_pn2")
    a(f"ds_read_b32 v20, v21 offset:{LN_}")
    a("s_waitcnt lgkmcnt(0)")
    a("v_cmp_eq_u32 vcc, -1, v20"); a("s_cmp_eq_u64 vcc, 0"); a("s_cbranch_scc1 L_pn3")
    retry("L_pn2",2,0x100000,lds=True)
    g.lab("L_pn3")
    settags(20)
    stamp(5,2)
    a("v_lshrrev_b32 v18, 5, v1"); a("v_lshlrev_b32 v18, 10, v18"); a("v_and_b32 v19, 0x1f0, v2"); a("v_add_u32 v18, v18, v19")
    a("v_and_b32 v19, 1, v3"); a("v_lshlrev_b32 v19, 3, v19"); a("v_lshl_add_u32 v19, v4, 4, v19")
    a(f"s_mul_i32 s61, s57, {RSTR}"); a("s_lshl_b32 s62, s58, 9"); a("s_add_u32 s61, s61, s62")
    a("s_mov_b32 s80, 0")
    g.lab("L_w0_poll")
    a("buffer_load_dwordx4 v[28:31], v18, s[40:43], s61 offen sc1")
    a("buffer_load_dwordx4 v[32:35], v18, s[40:43], s61 offen offset:2048 sc1")
    a("s_waitcnt vmcnt(0)")
    untag([28,32],16)
    a("s_cbranch_scc1 L_w0_ok")
    retry("L_w0_poll",SLEEP2)
    g.lab("L_w0_ok")
    stamp(6,2)
    pkadd(28,32)
    for k in range(4): a(f"v_mov_b32 v{32+k}, v{28+k}")
    a("s_nop 0")
    for k in range(4): a(f"v_permlane32_swap_b32 v{28+k}, v{32+k}")
    pkadd(28,32)
    a("v_cvt_pk_bf16_f32 v28, v28, v29"); a("v_cvt_pk_bf16_f32 v29, v30, v31")
    a("v_min_u32 v28, -2, v28"); a("v_min_u32 v29, -2, v29")
    a(f"ds_write_b64 v19, v[28:29] offset:{LQ}")
    a("s_branch L_extras")

    g.lab("L_wdown")
    srd(52,20,1728*640*2)
    a("s_mul_i32 s77, s83, 205"); a("s_lshr_b32 s77, s77, 10")
    a("s_mul_i32 s62, s77, 5"); a("s_sub_u32 s62, s83, s62"); a("s_lshl_b32 s62, s62, 8")
    a("s_mul_i32 s61, s77, 81920"); a("s_add_u32 s61, s61, s62")
    a("v_mul_u32_u24 v39, 20480, v3"); a("v_lshl_add_u32 v39, v4, 4, v39")
    for t in range(16):
        a(f"buffer_load_dwordx4 {r4(SL(32+t))}, v39, s[52:55], s61 offen offset:{(t%4)*1280}{wnt}")
        a("s_add_u32 s61, s61, 5120" if t%4==3 else "s_nop 0")
    if WDE:
        a("s_branch L_wdret")
        g.lab("L_f1e")
    if F1E:
        a("s_add_u32 s61, s77, 32"); a(f"s_mul_i32 s61, s61, {RSTR}")
        for k in range(4): a(f"buffer_load_dwordx4 {r4(SL(48+k))}, v2, s[40:43], s61 offen offset:{1024*k} sc1"); a("s_nop 0")
    if WDE: a(f"s_waitcnt vmcnt({4 if F1E else 0})")
    a("s_branch L_qw")
    g.lab("L_ffn2")
    GA=SL(48) if F1E else SL(0); GB=SL(4); GG=SL(5); GU=SL(6); TA=SL(7); TB=SL(7)+1; HC=SL(8)
    a("s_add_u32 s61, s77, 32"); a(f"s_mul_i32 s61, s61, {RSTR}")
    a("s_mov_b32 s80, 0")
    if F1E: a("s_branch L_w1_chk")
    g.lab("L_w1_poll")
    for k in range(4): a(f"buffer_load_dwordx4 {r4(GA+4*k)}, v2, s[40:43], s61 offen offset:{1024*k} sc1")
    g.lab("L_w1_chk")
    a("s_waitcnt vmcnt(0)")
    untag([GA+4*k for k in range(4)],TB)
    a("s_cbranch_scc1 L_w1_ok")
    retry("L_w1_poll",SLEEP2)
    g.lab("L_w1_ok")
    stamp(6,2)
    pkadd(GA,GA+4); pkadd(GA+8,GA+12); pkadd(GA,GA+8)
    a(f"v_and_b32 v{TB}, 8, v1"); a(f"v_cmp_eq_u32 vcc, 0, v{TB}")
    a("s_mov_b32 s61, 0xffff0000")
    for k in range(4): a(f"v_mov_b32_dpp v{GB+k}, v{GA+k} row_ror:8 {DPPF}")
    for k in range(4):
        a(f"v_cndmask_b32 v{GG+k}, v{GB+k}, v{GA+k}, vcc"); a(f"v_cndmask_b32 v{GU+k}, v{GA+k}, v{GB+k}, vcc")
    a("s_mov_b32 s62, 0x3d372713")
    a("s_mov_b32 s74, 0xc0135761")
    for k in range(4):
        gk=GG+k; uk=GU+k
        a(f"v_cvt_pk_bf16_f32 v{TA}, v{gk}, v{uk}"); a(f"v_lshlrev_b32 v{gk}, 16, v{TA}"); a(f"v_and_b32 v{uk}, s61, v{TA}")
        a(f"v_mul_f32 v{TB}, v{gk}, v{gk}"); a(f"v_mul_f32 v{TB}, s62, v{TB}"); a(f"v_fma_f32 v{TB}, v{TB}, v{gk}, v{gk}")
        a(f"v_mul_f32 v{TB}, s74, v{TB}"); a(f"v_exp_f32 v{TB}, v{TB}"); a("s_nop 0"); a(f"v_add_f32 v{TB}, 1.0, v{TB}"); a(f"v_rcp_f32 v{TB}, v{TB}"); a("s_nop 0")
        a(f"v_mul_f32 v{TB}, v{gk}, v{TB}"); a(f"v_cvt_pk_bf16_f32 v{TB}, v{TB}, v{TB}"); a(f"v_and_b32 v{TB}, s61, v{TB}")
        a(f"v_mul_f32 v{gk}, v{TB}, v{uk}")
    a(f"v_cvt_pk_bf16_f32 v{GU}, v{GG}, v{GG+1}"); a(f"v_cvt_pk_bf16_f32 v{GU+1}, v{GG+2}, v{GG+3}")
    a(f"v_lshrrev_b32 v{TA}, 1, v3"); a(f"v_lshlrev_b32 v{TA}, 7, v{TA}"); a(f"v_and_b32 v{TB}, 7, v1"); a(f"v_lshl_add_u32 v{TA}, v{TB}, 4, v{TA}"); a(f"v_and_b32 v{TB}, 1, v3"); a(f"v_lshl_add_u32 v{TA}, v{TB}, 3, v{TA}")
    a(f"ds_write_b64 v{TA}, v[{GU}:{GU+1}] offset:{LH}")
    a(f"v_bfe_u32 v{TB}, v1, 3, 1"); a(f"v_lshlrev_b32 v{TB}, 7, v{TB}"); a(f"v_lshl_add_u32 v{TB}, v3, 5, v{TB}")
    a(f"ds_read_b128 {r4(HC)}, v{TB} offset:{LH}"); a(f"ds_read_b128 {r4(HC+4)}, v{TB} offset:{LH+16}")
    a("s_mov_b32 s61, 0x01000100"); a("s_mov_b32 s62, 0x03020302")
    a("s_waitcnt lgkmcnt(0)")
    buildX(HC,0)
    for i in range(16):
        if i<15: buildX(HC,i+1)
        else: a("s_nop 0")
        C="0" if i==0 else "v[40:43]"
        a(f"v_mfma_f32_16x16x32_bf16 v[40:43], {r4(28+4*(i%2))}, {r4(SL(32+i))}, {C}")
    a("s_mul_i32 s62, s77, 5"); a("s_sub_u32 s62, s83, s62"); a("s_lshl_b32 s62, s62, 10"); a(f"s_mul_i32 s61, s77, {RSTR*2}"); a("s_add_u32 s61, s61, s62"); a(f"s_add_u32 s61, s61, {RF2}")
    a("s_nop 5")
    tag(40)
    a("buffer_store_dwordx4 v[40:43], v2, s[40:43], s61 offen sc1")
    a("s_mov_b32 s3, 4")
    prio(1)
    a("s_branch L_exl")

    g.lab("L_code_end")
    o.append('.section .rodata,"a"'); o.append(".p2align 6"); o.append(f".amdhsa_kernel {NAME}")
    for x in ["next_free_vgpr 256","next_free_sgpr 102","accum_offset 256","group_segment_fixed_size 0","kernarg_size 96","user_sgpr_count 2","user_sgpr_kernarg_segment_ptr 1","system_sgpr_workgroup_id_x 1","float_denorm_mode_32 3"]:
        o.append("  .amdhsa_"+x)
    o.append(".end_amdhsa_kernel")
    return "\n".join(o)+"\n"

if __name__=="__main__":
    import argparse
    ap=argparse.ArgumentParser(); ap.add_argument("out"); ap.add_argument("kw",nargs="*")
    ar=ap.parse_args()
    kw={}
    for x in ar.kw:
        k,v=x.split("="); kw[k]=int(v) if v.lstrip("-").isdigit() else v
    open(ar.out,"w").write(gen(**kw))
```

```python
import sys
NAME="parallel_sum__gqa_block_cached__geglu_ffn__decode_kernel"
HDR=open("parallel_sum__gqa_block_cached__geglu_ffn__decode.s.ref").read().split("; Override launch")[0]

RU=0; RST=4096; RFL=4608; RF2=5120; RY=10240
NFREE=20
STAMP_OFF=0x8000000
LQ=0; LN_=256; LF=320; LO=512; LO_STR=544; LY=LO+8*LO_STR; LY_STR=2560; LX=LY+8*LY_STR; LU=LX+4096; LH=LU+4096; LS=LH+256; LC=LS+64; LDS_BYTES=LC+64
LOG2E=0x3fb8aa3b
SCALE=0x3db504f3
DPPF="row_mask:0xf bank_mask:0xf"
T=[16,17,18,19]
SN=15

DOC="""; ---------------------------------------------------------------------------------------------
;  * workgroup = (batch b, head h, quarter of the 4096 keys); the 8 workgroups of a head share wg%8.
; ---------------------------------------------------------------------------------------------"""

class G:
    def __init__(s): s.o=[]; s.vm=[]
    def a(s,x): s.o.append("    "+x)
    def lab(s,x): s.o.append(x+":")
    def vmem(s,tag,x): s.a(x); s.vm.append(tag)
    def vreset(s): s.vm=[]
    def wait(s,tag):
        i=len(s.vm)-1-s.vm[::-1].index(tag)
        n=len(s.vm)-1-i
        assert n<=63
        s.a(f"s_waitcnt vmcnt({n})")

def mix(A,B):
    out=[]; ia=ib=0
    while ia<len(A) or ib<len(B):
        if ib>=len(B) or (ia<len(A) and ia*len(B)<=ib*len(A)): out.append(A[ia]); ia+=1
        else: out.append(B[ib]); ib+=1
    return out

def gen(KNT=1, WNT=1, ONT=0, stamps=0, NPRE0=6, NEX=12, SLEEP1=16, SLEEP2=8, SLEEPF=4, PAD=0, OLAST=0, RPOS=20, DBG=0, FW=7, PADAT=0, FIN=2, FTH=8, SLEEPG=24, YW=0, ROT=0, PL=0, PS=0, FPOS=3, FDEL=0, FSL=1, HELP=0, OSC=0, FAST=1, CW=0, RBSH=3, RSTR=32256, ASYM=1, STC=1, F7=1, F1E=0, YT=0, PIPE=1, SP3=0, UNEV=0, WDE=0, KO=0, OSPAN=32, DEPTH=0, JIT=0):
    WS_SIZE=64*RSTR
    g=G(); a=g.a
    knt=["", " nt", " sc1 nt", " sc0 nt", " sc0 sc1 nt", " sc1", " sc0 sc1"][KNT]; wnt=" nt" if WNT else ""; ont=["", " nt", " sc1", " sc0"][ONT]
    def stamp(k,mode=1):
        if PAD and PADAT==k+10*(mode-1) and PADAT: a("s_memrealtime s[100:101]"); a("s_waitcnt lgkmcnt(0)")
        if stamps==mode or (stamps and k in (0,1,2,7) and mode==1) or (stamps==3 and k in (5,6) and mode==1): a(f"s_memrealtime s[{84+2*k}:{85+2*k}]")
    def prio(p): a(f"s_setprio {p}")
    jn=[0]
    def jit(mask,val,n):
        if not JIT: return
        jn[0]+=1
        a(f"s_and_b32 s100, s2, {mask}"); a(f"s_cmp_lg_u32 s100, {val}"); a(f"s_cbranch_scc1 L_jit{jn[0]}")
        for _ in range(n): a("s_sleep 127")
        g.lab(f"L_jit{jn[0]}")
    def xrow(op,v,t,steps=(16,32)):
        for st in steps:
            a(f"v_mov_b32 v{t}, v{v}"); a("s_nop 1"); a(f"v_permlane{st}_swap_b32 v{v}, v{t}"); a(f"{op} v{v}, v{v}, v{t}")
    def dpp(op,v,ctrl,nop=True):
        if nop: a("s_nop 1")
        a(f"{op}_dpp v{v}, v{v}, v{v} {ctrl} {DPPF}")
    def srd(d,p,size):
        a(f"s_mov_b32 s{d}, s{p}"); a(f"s_mov_b32 s{d+1}, s{p+1}"); a(f"s_mov_b32 s{d+2}, {size:#x}"); a(f"s_mov_b32 s{d+3}, 0x20000")
    def ldsvalid(regs,t):
        if len(regs)==2: a(f"v_max_u32 v{t}, v{regs[0]}, v{regs[1]}"); k=2
        else: a(f"v_max3_u32 v{t}, v{regs[0]}, v{regs[1]}, v{regs[2]}"); k=3
        while k+1<len(regs):
            a(f"v_max3_u32 v{t}, v{t}, v{regs[k]}, v{regs[k+1]}"); k+=2
        if k<len(regs): a(f"v_max_u32 v{t}, v{t}, v{regs[k]}")
        a(f"v_cmp_eq_u32 vcc, -1, v{t}")
        a("s_cmp_eq_u64 vcc, 0")
    def untag(bases,t):
        regs=[]
        for b in bases:
            for k in range(4): a(f"v_xor_b32 v{b+k}, s{T[k]}, v{b+k}"); regs.append(b+k)
        a(f"v_or3_b32 v{t}, v{regs[0]}, v{regs[1]}, v{regs[2]}"); k=3
        while k+1<len(regs):
            a(f"v_or3_b32 v{t}, v{t}, v{regs[k]}, v{regs[k+1]}"); k+=2
        if k<len(regs): a(f"v_or_b32 v{t}, v{t}, v{regs[k]}")
        a(f"v_and_b32 v{t}, 15, v{t}")
        a(f"v_cmp_ne_u32 vcc, 0, v{t}")
        a("s_cmp_eq_u64 vcc, 0")
    def tag(b):
        for k in range(4): a(f"v_and_or_b32 v{b+k}, v{b+k}, -16, s{T[k]}")
    def settags(v):
        a(f"v_readfirstlane_b32 s{SN}, v{v}")
        a("s_nop 0")
        for k in range(4): a(f"s_bfe_u32 s{T[k]}, s{SN}, {(4<<16)|(4*k):#x}")
    def retry(lab,sl,lim=0x10000,lds=False):
        if DBG&1 and not lds: return
        a(f"s_sleep {sl}"); a("s_add_u32 s80, s80, 1"); a(f"s_cmp_lt_u32 s80, {lim:#x}"); a(f"s_cbranch_scc1 {lab}")
    def rootpoll(tagn,v):
        a("s_mov_b32 s80, 0"); a("v_mov_b32 v21, 0")
        a(f"s_branch L_rp_chk{tagn}")
        g.lab(f"L_rp{tagn}")
        a(f"buffer_load_dword v{v}, v21, s[44:47], 0 offen sc1")
        a("s_waitcnt vmcnt(0)")
        g.lab(f"L_rp_chk{tagn}")
        a(f"v_cmp_eq_u32 vcc, 0, v{v}"); a("s_cmp_eq_u64 vcc, 0"); a(f"s_cbranch_scc1 L_rp_ok{tagn}")
        retry(f"L_rp{tagn}",SLEEP1)
        g.lab(f"L_rp_ok{tagn}")
        settags(v)
    def masks(t0,t1):
        a(f"v_and_b32 v{t0}, 1, v1"); a(f"v_lshlrev_b32 v{t0}, 4, v{t0}"); a(f"v_mov_b32 v{t1}, 0xffff"); a(f"v_lshlrev_b32 v{t0}, v{t0}, v{t1}")
        a(f"v_bfe_u32 v{t1}, v1, 1, 2")
        for r in range(4):
            a(f"v_cmp_eq_u32 vcc, {r}, v{t1}"); a("s_nop 1"); a(f"v_cndmask_b32 v{6+r}, 0, v{t0}, vcc")
    def pkadd(d,s):
        for k in range(2): a(f"v_pk_add_f32 v[{d+2*k}:{d+2*k+1}], v[{d+2*k}:{d+2*k+1}], v[{s+2*k}:{s+2*k+1}]")
    def scatter_reduce(b,dst,t0,t1):
        a("s_nop 1")
        a(f"v_add_f32_dpp v{t0}, v{b}, v{b} row_ror:8 row_mask:0xf bank_mask:0x3")
        a(f"v_add_f32_dpp v{t0}, v{b+1}, v{b+1} row_ror:8 row_mask:0xf bank_mask:0xc")
        a(f"v_add_f32_dpp v{t1}, v{b+2}, v{b+2} row_ror:8 row_mask:0xf bank_mask:0x3")
        a(f"v_add_f32_dpp v{t1}, v{b+3}, v{b+3} row_ror:8 row_mask:0xf bank_mask:0xc")
        a(f"v_add_f32_dpp v{dst}, v{t0}, v{t0} row_shl:4 row_mask:0xf bank_mask:0x5")
        a("s_nop 0")
        a(f"v_add_f32_dpp v{dst}, v{t1}, v{t1} row_shr:4 row_mask:0xf bank_mask:0xa")
        xrow("v_add_f32",dst,t0)
    SL=lambda i: 48+4*i
    def r4(b): return f"v[{b}:{b+3}]"
    o=g.o
    o.append(HDR.rstrip("\n"))
    o.append(f"; @launch grid=(256,1,1) block=(512,1,1) lds={LDS_BYTES}")
    o.append(DOC)
    o.append('.amdgcn_target "amdgcn-amd-amdhsa--gfx950"'); o.append(".text"); o.append(f".globl {NAME}"); o.append(".p2align 8"); o.append(f".type {NAME},@function"); o.append(f"{NAME}:")
    a("s_cmp_ge_u32 s2, 256"); a("s_cbranch_scc1 L_end")
    a("s_load_dwordx16 s[4:19], s[0:1], 0"); a("s_load_dwordx8 s[20:27], s[0:1], 64")
    stamp(0)
    if PAD: a("s_memrealtime s[100:101]")
    a("v_lshrrev_b32 v3, 6, v0"); a("v_and_b32 v1, 63, v0"); a("v_readfirstlane_b32 s56, v3"); a("v_lshlrev_b32 v2, 4, v1")
    a("s_and_b32 s57, s2, 7"); a("s_lshl_b32 s57, s57, 2"); a("s_lshr_b32 s61, s2, 3"); a("s_and_b32 s62, s61, 3"); a("s_add_u32 s57, s57, s62")
    a("s_lshr_b32 s58, s2, 7")
    a("s_lshr_b32 s59, s2, 5"); a("s_and_b32 s59, s59, 3")
    a("s_lshl_b32 s81, s58, 5"); a("s_add_u32 s81, s81, s57")
    a("s_lshl_b32 s64, s81, 20"); a("s_lshl_b32 s62, s59, 18"); a("s_add_u32 s64, s64, s62")
    a("s_lshr_b32 s62, s56, 2"); a("s_lshl_b32 s62, s62, 17"); a("s_add_u32 s64, s64, s62")
    a("s_and_b32 s69, s56, 3"); a("s_lshl_b32 s62, s69, 10"); a("s_add_u32 s64, s64, s62")
    if ROT:
        a("s_mov_b32 s100, s64")
        if ROT==1: a("s_lshr_b32 s62, s2, 3")
        elif ROT==2: a("s_mov_b32 s62, s2")
        elif ROT==3: a("s_mul_i32 s62, s2, 11")
        elif ROT==4: a("s_lshr_b32 s62, s2, 3"); a("s_lshl_b32 s62, s62, 2")
        elif ROT==5: a("s_mov_b32 s62, s57")
        elif ROT==6: a("s_and_b32 s62, s57, 30"); a("s_add_u32 s62, s62, s58")
        elif ROT==7: a("s_lshl_b32 s62, s2, 2")
        elif ROT==8: a("s_lshl_b32 s62, s58, 4"); a("s_xor_b32 s62, s62, s2")
        elif ROT==9: a("s_and_b32 s62, s2, 7")
        elif ROT==10: a("s_and_b32 s62, s2, 24")
        elif ROT==11: a("s_add_u32 s62, s2, s59")
        elif ROT==12: a("s_lshl_b32 s62, s59, 3"); a("s_add_u32 s62, s62, s2")
        a("s_and_b32 s62, s62, 31"); a("s_lshl_b32 s62, s62, 12"); a("s_or_b32 s64, s64, s62")
    a("s_mov_b32 s65, s64")
    a("s_mov_b32 s82, 0")
    jit(71,70,5)
    if FAST:
        a("s_mov_b32 s30, 0x4000000"); a("s_mov_b32 s31, 0x20000")
        a("s_waitcnt lgkmcnt(0)")
        a("s_mov_b32 s28, s6"); a("s_mov_b32 s29, s7")
        for i in range(NPRE0):
            if i==0: stamp(3,4)
            a(f"buffer_load_dwordx4 {r4(SL(i))}, v2, s[28:31], s64 offen{knt}"); a("s_add_u32 s64, s64, 4096")
        if stamps==4:
            stamp(4,4)
            a("s_cmp_lg_u32 s56, 1"); a("s_cbranch_scc1 L_ns4")
            a(f"s_waitcnt vmcnt({NPRE0-1})"); stamp(5,4); a("s_waitcnt vmcnt(0)"); stamp(6,4)
            g.lab("L_ns4")
    if CW:
        a(f"s_cmp_ge_u32 s2, {CW}"); a("s_cbranch_scc1 L_nocw"); a("s_cmp_ge_u32 s56, 3"); a("s_cbranch_scc1 L_nocw")
        a("s_getpc_b64 s[62:63]")
        g.lab("L_pc")
        a("v_lshlrev_b32 v36, 7, v0"); a("v_min_u32 v36, L_code_end-L_pc-4, v36")
        a("global_load_dword v47, v36, s[62:63]")
        a("s_lshr_b32 s63, s2, 1"); a("s_and_b32 s63, s63, 3")
        g.lab("L_nocw")
    a("v_lshrrev_b32 v3, 4, v1"); a("v_and_b32 v4, 15, v1")
    if RBSH==3:
        a("s_bfe_u32 s63, s2, 0x20003"); a("s_lshr_b32 s60, s2, 5"); a("s_lshl_b32 s60, s60, 3")
        if ASYM: a("s_bfe_u32 s62, s2, 0x20001"); a("s_or_b32 s60, s60, s62"); a("s_and_b32 s62, s2, 1"); a("s_lshl_b32 s62, s62, 2"); a("s_or_b32 s60, s60, s62")
        else: a("s_and_b32 s62, s2, 7"); a("s_or_b32 s60, s60, s62")
    else:
        a("s_bfe_u32 s63, s2, 0x20005"); a("s_lshr_b32 s60, s2, 7"); a("s_lshl_b32 s60, s60, 5"); a("s_and_b32 s62, s2, 31"); a("s_or_b32 s60, s60, s62")
    if F7:
        a("s_mov_b32 s62, s60")
        for x,y in ((39,59),(47,60),(55,61)):
            a(f"s_cmp_eq_u32 s62, {x}"); a(f"s_cselect_b32 s60, {y}, s60"); a(f"s_cmp_eq_u32 s62, {y}"); a(f"s_cselect_b32 s60, {x}, s60")
    a("s_cmp_lt_u32 s60, 32")
    a("s_cselect_b32 s14, 1, 0"); a("s_mov_b32 s79, 0"); a("s_mov_b32 s78, 3456"); a("s_cselect_b32 s78, 8192, s78"); a("s_cselect_b32 s76, 8, 7"); a("s_cselect_b32 s77, 15, 7")
    a("s_and_b32 s74, s60, 31")
    a("s_sub_u32 s66, 58, s60")
    a("s_cselect_b32 s67, 0, %d"%(0 if DBG&2 else 1))
    a("s_lshl_b32 s71, s60, 2"); a("s_add_u32 s71, s71, s63")
    a(f"s_mul_i32 s75, s60, {RSTR}"); a("s_lshl_b32 s62, s63, 10"); a("s_add_u32 s75, s75, s62")
    if ASYM: a("s_mov_b32 s70, 10"); a("s_mov_b32 s68, 0")
    else: a("s_cmp_lt_u32 s63, 2"); a("s_cselect_b32 s70, 8, 12"); a("s_cselect_b32 s68, 0, -128")
    if UNEV:
        a("s_mov_b32 s70, 0x000e0c0e"); a("s_mov_b32 s68, 0xa0683800")
        a("s_bitcmp1_b32 s2, 0"); a("s_cselect_b32 s70, 0x0a0a0a0a, s70"); a("s_cselect_b32 s68, 0x78502800, s68")
        a("s_lshl_b32 s62, s69, 3"); a("s_lshr_b32 s70, s70, s62"); a("s_and_b32 s70, s70, 0xff"); a("s_lshr_b32 s68, s68, s62"); a("s_and_b32 s68, s68, 0xff")
        a("s_mul_i32 s62, s63, 160"); a("s_add_u32 s68, s68, s62")
    else:
        a("s_lshl_b32 s62, s63, 2"); a("s_add_u32 s62, s62, s69"); a("s_mul_i32 s62, s62, s70"); a("s_lshl_b32 s62, s62, 2"); a("s_add_u32 s68, s68, s62")
    a("v_mov_b32 v37, s68"); a("v_mad_u32_u24 v22, v3, s70, v37"); a("v_mul_lo_u32 v36, v22, s78")
    a("s_lshl_b32 s62, s74, s76"); a("v_and_b32 v37, s77, v1"); a("v_lshl_add_u32 v36, v37, 4, v36"); a("v_add_u32 v36, s62, v36"); a("v_mov_b32 v37, 0")
    a("v_and_b32 v38, 8, v1"); a("v_cmp_eq_u32 vcc, 0, v38")
    if ASYM:
        a("s_lshr_b32 s83, s2, 1")
        a("s_cmp_lt_u32 s83, 80"); a("s_cselect_b32 s61, %d, 0"%(0 if DBG&4 else 5))
        a("s_sub_u32 s71, s71, 240"); a("s_cmp_lt_u32 s71, 7"); a("s_cselect_b32 s61, %d, s61"%(0 if DBG&34 else 3)); a("s_cselect_b32 s62, s71, 0"); a("s_cselect_b32 s83, 128, s83"); a("s_add_u32 s83, s83, s62")
        a("s_bitcmp0_b32 s2, 0"); a("s_cselect_b32 s61, %d, s61"%(0 if DBG&34 else 3))
    else:
        a("s_lshl_b32 s83, s60, 1"); a("s_and_b32 s61, s63, 1"); a("s_add_u32 s83, s83, s61")
        a("s_cmp_lt_u32 s83, 80"); a("s_cselect_b32 s61, %d, 0"%(0 if DBG&4 else 5))
        a("s_cmp_lt_u32 s63, 2"); a("s_cselect_b32 s61, %d, s61"%(0 if DBG&34 else 3))
        a("s_sub_u32 s71, s71, 118")
        a("s_cmp_lt_u32 s71, 135"); a("s_cselect_b32 s62, %d, 0"%(0 if DBG&34 else 3))
        a("s_cmp_ge_i32 s66, 0"); a("s_cselect_b32 s61, s61, s62"); a("s_cselect_b32 s83, s83, s71")
    a("s_cmp_eq_u32 s61, 3"); a(f"s_cselect_b32 s62, {FW}, 3")
    a("s_cmp_eq_u32 s56, s62"); a("s_cselect_b32 s3, s61, 0")
    if HELP:
        a("s_cmp_eq_u32 s61, 5"); a("s_cselect_b32 s62, 4, 99"); a("s_cmp_eq_u32 s56, s62"); a("s_cselect_b32 s3, 6, s3")
    a("s_cmp_eq_u32 s56, 0"); a("s_cselect_b32 s3, 1, s3")
    a("s_cmp_eq_u32 s56, 2"); a("s_cselect_b32 s3, 2, s3")
    a("s_cmp_ge_u32 s56, 4"); a("s_cselect_b32 s67, s67, 0")
    for k in range(4): a(f"v_mov_b32 v{40+k}, -1")
    if not FAST:
        a("s_waitcnt lgkmcnt(0)")
        srd(28,6,64<<20)
    srd(40,26,WS_SIZE)
    a(f"s_mov_b32 s101, {63*RSTR}")
    if WDE:
        a("s_cmp_eq_u32 s3, 3"); a("s_cbranch_scc1 L_wdown")
        g.lab("L_wdret")
    a("s_cmp_eq_u32 s67, 1"); a("s_cbranch_scc0 L_pref")
    prio(3)
    a("v_lshrrev_b32 v38, 5, v1"); a("v_mul_u32_u24 v38, 1280, v38"); a("v_and_b32 v39, 31, v1"); a("v_lshl_add_u32 v12, v39, 3, v38")
    a("s_cmp_lg_u32 s56, 4"); a("s_cbranch_scc1 L_noe")
    a(f"buffer_load_dword v20, v37, s[40:43], s101 offen sc1")
    g.lab("L_noe")
    a("s_cmp_lg_u32 s56, 5"); a("s_cbranch_scc1 L_nox")
    srd(48,4,2560)
    for k in range(5): a(f"buffer_load_dwordx2 v[{24+2*k}:{25+2*k}], v12, s[48:51], 0 offen offset:{256*k}")
    g.lab("L_nox")
    a("s_cmp_eq_u32 s14, 1"); a("s_cselect_b32 s61, s10, s16"); a("s_cselect_b32 s62, s11, s17"); a("s_cselect_b32 s72, s10, s18"); a("s_cselect_b32 s73, s11, s19")
    a("v_mov_b32 v38, s72"); a("v_mov_b32 v39, s61"); a("v_cndmask_b32 v10, v38, v39, vcc")
    a("v_mov_b32 v38, s73"); a("v_mov_b32 v39, s62"); a("v_cndmask_b32 v11, v38, v39, vcc")
    a("v_lshl_add_u64 v[10:11], v[36:37], 0, v[10:11]")
    NU=14 if UNEV else 10 if ASYM else 12
    for i in range(NU):
        if i==8 and not ASYM: a("s_cmp_eq_u32 s70, 8"); a("s_cbranch_scc1 L_w8")
        if UNEV and i in (0,10,12): a(f"s_cmp_eq_u32 s70, {i}"); a("s_cbranch_scc1 L_w8")
        a(f"global_load_dwordx4 {r4(SL(32+i))}, v[10:11], off{wnt}")
        if i<NU-1: a("v_lshl_add_u64 v[10:11], v[10:11], 0, s[78:79]")
    g.lab("L_w8")
    a("s_lshl_b32 s61, s69, 10"); a("v_add_u32 v13, s61, v2"); a(f"ds_write_b128 v13, v[40:43] offset:{LX}")
    if UNEV:
        a("s_cmp_lg_u32 s70, 0"); a("s_cbranch_scc1 L_w9")
        for k in range(4): a(f"v_mov_b32 v{40+k}, 0")
        g.lab("L_w9")
    a(f"ds_write_b128 v13, v[40:43] offset:{LU}")
    a("s_waitcnt lgkmcnt(0)")
    a("s_barrier")
    a("s_mov_b32 s82, 1")
    a("s_branch L_unit2")
    g.lab("L_pref")
    prio(2)
    g.vreset()
    def kvload(kind,i,slot):
        srdn="s[28:31]" if kind=="K" else "s[32:35]"
        p=64 if kind=="K" else 65
        g.vmem((kind,i), f"buffer_load_dwordx4 {r4(SL(slot))}, v2, {srdn}, s{p} offen{knt}")
        a(f"s_add_u32 s{p}, s{p}, 4096")
        if ROT: a(f"s_and_b32 s{p}, s{p}, 0x1f000"); a(f"s_or_b32 s{p}, s{p}, s100")
    Vs=[("V",i) for i in range(32)]; Os=[("O",i) for i in range(20)]
    R=mix(Vs[:OSPAN],Os[KO:20-OLAST])+Vs[OSPAN:]+Os[20-OLAST:]
    slot_of={}
    for i in range(32): slot_of[("K",i)]=i
    for k,t in enumerate(R): slot_of[t]=(32+k) if k<20-KO else k-(20-KO)
    for k in range(KO): slot_of[("O",k)]=52-KO+k
    def wosetup():
        srd(36,12,4096*640*2)
        a("v_mul_u32_u24 v5, 5120, v3"); a("v_lshl_add_u32 v5, v4, 4, v5")
        a("s_lshl_b32 s72, s57, 7"); a("s_lshl_b32 s62, s56, 4"); a("s_add_u32 s72, s72, s62"); a("s_mul_i32 s72, s72, 1280"); a("s_add_u32 s73, s72, 2560")
    def sload(t):
        k=slot_of[t]
        if DEPTH: a(f"s_waitcnt vmcnt({DEPTH})")
        if t[0] in "KV": kvload(t[0],t[1],k)
        elif DBG&8 and t[1]%8!=0: pass
        elif DBG&16: pass
        else:
            aa,cb=divmod(t[1],5)
            so="s72" if aa<2 else "s73"
            g.vmem(t, f"buffer_load_dwordx4 {r4(SL(k))}, v5, s[36:39], {so} offen offset:{(aa%2)*1280+cb*256}{ont}")
            a("s_nop 0")
    for i in range(32):
        if i==NPRE0:
            a("s_bitcmp1_b32 s82, 0"); a("s_cbranch_scc1 L_nobar0")
            a("v_mov_b32 v37, -1"); a("v_lshlrev_b32 v36, 2, v1"); a(f"ds_write_b32 v36, v37 offset:{LQ}"); a(f"ds_write_b32 v36, v37 offset:{LN_}")
            if STC: a("v_mov_b32 v36, 0"); a(f"ds_write_b32 v36, v36 offset:{LC}")
            a("s_waitcnt lgkmcnt(0)")
            a("s_barrier")
            masks(36,37)
            g.lab("L_nobar0")
        if i==RPOS:
            a("s_cmp_lg_u32 s3, 1"); a("s_cbranch_scc1 L_norp")
            a("v_mov_b32 v21, 0")
            a("s_cmp_ge_i32 s66, 0"); a("s_cbranch_scc1 L_norp")
            a(f"buffer_load_dword v20, v21, s[40:43], s101 offen sc1")
            g.lab("L_norp")
        if KO and i==NPRE0: wosetup()
        if FAST and i<NPRE0: g.vm.append(("K",i))
        else: sload(("K",i))
        if KO and i>=NPRE0+2 and (i-NPRE0-2)%6==0 and (i-NPRE0-2)//6<KO: sload(("O",(i-NPRE0-2)//6))
    a("s_cmp_eq_u32 s3, 1"); a("s_cbranch_scc1 L_poller")
    g.lab("L_extras")
    prio(1)
    a("v_mov_b32 v45, 0"); a("v_mov_b32 v23, 0"); a("v_mov_b32 v44, 0"); a("v_mov_b32 v22, 0")
    srd(32,8,64<<20); srd(36,12,4096*640*2)
    a("v_mul_u32_u24 v5, 5120, v3"); a("v_lshl_add_u32 v5, v4, 4, v5")
    a("s_lshl_b32 s72, s57, 7"); a("s_lshl_b32 s62, s56, 4"); a("s_add_u32 s72, s72, s62"); a("s_mul_i32 s72, s72, 1280"); a("s_add_u32 s73, s72, 2560")
    if DBG&8:
        a("s_lshl_b32 s72, s2, 3"); a("s_add_u32 s72, s72, s56"); a("s_mul_i32 s72, s72, 2560"); a("s_add_u32 s73, s72, 1024"); a("v_mov_b32 v5, v2")
    a("s_cmp_eq_u32 s3, 3"); a("s_cbranch_scc1 L_wdown" if not WDE else "s_cbranch_scc1 L_f1e")
    g.lab("L_exl")
    for t in R[:NEX]: sload(t)
    a("s_cmp_eq_u32 s3, 4"); a("s_cbranch_scc1 L_rest")
    g.lab("L_qw")
    stamp(1)
    a(f"v_lshlrev_b32 v36, 4, v4")
    a("s_mov_b32 s80, 0")
    g.lab("L_qwait")
    a(f"ds_read_b128 v[10:13], v36 offset:{LQ}")
    a(f"ds_read_b32 v40, v45 offset:{LN_}")
    a("s_waitcnt lgkmcnt(0)")
    ldsvalid([10,11,12,13],37)
    a("s_cbranch_scc1 L_qok")
    retry("L_qwait",2,0x100000,lds=True)
    g.lab("L_qok")
    stamp(2)
    prio(3)
    settags(40)
    a("s_mov_b32 s74, 0x%x"%SCALE); a("s_mov_b32 s75, 0xffff0000")
    P=28; TT=36
    for d in range(4):
        g.wait(("K",8*d+7))
        for j in range(4):
            for t in range(8):
                src2="0" if j==0 else f"v{P+t}"
                a(f"v_dot2_f32_bf16 v{P+t}, v{SL(8*d+t)+j}, v{10+j}, {src2}")
        for h in range(2):
            b=P+4*h
            a(f"v_add_f32_dpp v{TT+2*h}, v{b}, v{b} row_ror:8 row_mask:0xf bank_mask:0x3")
            a(f"v_add_f32_dpp v{TT+2*h}, v{b+1}, v{b+1} row_ror:8 row_mask:0xf bank_mask:0xc")
            a(f"v_add_f32_dpp v{TT+2*h+1}, v{b+2}, v{b+2} row_ror:8 row_mask:0xf bank_mask:0x3")
            a(f"v_add_f32_dpp v{TT+2*h+1}, v{b+3}, v{b+3} row_ror:8 row_mask:0xf bank_mask:0xc")
        for h in range(2):
            a(f"v_add_f32_dpp v{TT+4+h}, v{TT+2*h}, v{TT+2*h} row_shl:4 row_mask:0xf bank_mask:0x5")
            a(f"v_add_f32_dpp v{TT+4+h}, v{TT+2*h+1}, v{TT+2*h+1} row_shr:4 row_mask:0xf bank_mask:0xa")
        a("s_nop 0")
        for qp in ("[1,0,3,2]","[2,3,0,1]"):
            for h in range(2): a(f"v_add_f32_dpp v{TT+4+h}, v{TT+4+h}, v{TT+4+h} quad_perm:{qp} {DPPF}")
            a("s_nop 0")
        a(f"v_cvt_pk_bf16_f32 v{TT}, v{TT+4}, v{TT+5}")
        a(f"v_lshlrev_b32 v{TT+1}, 16, v{TT}"); a(f"v_and_b32 v{TT+2}, s75, v{TT}")
        a(f"v_mul_f32 v{TT+1}, s74, v{TT+1}"); a(f"v_mul_f32 v{TT+2}, s74, v{TT+2}")
        a(f"v_cvt_pk_bf16_f32 v{TT}, v{TT+1}, v{TT+2}")
        a(f"v_lshlrev_b32 v{14+2*d}, 16, v{TT}"); a(f"v_and_b32 v{15+2*d}, s75, v{TT}")
    a("v_max3_f32 v40, v14, v15, v16"); a("v_max3_f32 v41, v17, v18, v19"); a("v_max3_f32 v40, v40, v20, v21"); a("v_max_f32 v40, v40, v41")
    dpp("v_max_f32",40,"row_ror:4"); dpp("v_max_f32",40,"row_ror:8"); xrow("v_max_f32",40,41)
    a("s_mov_b32 s74, 0x%x"%LOG2E)
    a("v_mul_f32 v36, s74, v40")
    for k in range(8): a(f"v_fma_f32 v{14+k}, v{14+k}, s74, -v36")
    for k in range(8): a(f"v_exp_f32 v{14+k}, v{14+k}")
    a(f"v_mov_b32 v38, s{SN}")
    a("v_add_f32 v37, v14, v15"); a("v_add_f32 v40, v16, v17"); a("v_add_f32 v37, v37, v18"); a("v_add_f32 v40, v40, v19"); a("v_add_f32 v37, v37, v20"); a("v_add_f32 v40, v40, v21"); a("v_add_f32 v37, v37, v40")
    for k in range(8): a(f"v_cvt_pk_bf16_f32 v{14+k}, v{14+k}, v{14+k}")
    dpp("v_add_f32",37,"row_ror:4",nop=False); dpp("v_add_f32",37,"row_ror:8"); xrow("v_add_f32",37,41)
    a(f"v_mov_b32 v39, s{SN}")
    if STC:
        a("s_lshl_b32 s61, s56, 3"); a("v_mov_b32 v40, s61"); a("v_mov_b32 v41, 1")
        a("s_mov_b64 exec, 1")
        a(f"ds_write_b64 v40, v[36:37] offset:{LS}")
        a(f"ds_add_rtn_u32 v41, v45, v41 offset:{LC}")
        a("s_mov_b64 exec, -1")
        a("v_and_b32 v40, 7, v1"); a("v_lshlrev_b32 v40, 3, v40")
        a("s_waitcnt lgkmcnt(0)")
        a("v_readfirstlane_b32 s61, v41")
        a("s_nop 0")
        a("s_cmp_lg_u32 s61, 7"); a("s_cbranch_scc1 L_nost")
        a(f"ds_read_b64 v[42:43], v40 offset:{LS}")
        a("s_lshl_b32 s61, s59, 4"); a(f"s_mul_i32 s62, s81, {RSTR}"); a("s_add_u32 s61, s61, s62"); a(f"s_add_u32 s61, s61, {RST}")
        a("s_waitcnt lgkmcnt(0)")
        a("v_mov_b32 v36, v42")
        for ctrl in ("quad_perm:[1,0,3,2]","quad_perm:[2,3,0,1]","row_half_mirror"): dpp("v_max_f32",36,ctrl)
        a("v_sub_f32 v37, v42, v36"); a("v_exp_f32 v37, v37"); a("s_nop 0"); a("v_mul_f32 v37, v37, v43")
        for ctrl in ("quad_perm:[1,0,3,2]","quad_perm:[2,3,0,1]","row_half_mirror"): dpp("v_add_f32",37,ctrl)
        jit(39,33,8)
        a("s_mov_b64 exec, 1")
        a("buffer_store_dwordx4 v[36:39], v45, s[40:43], s61 offen sc1")
        a("s_mov_b64 exec, -1")
        g.lab("L_nost")
    else:
        a("s_lshl_b32 s61, s59, 3"); a("s_add_u32 s61, s61, s56"); a("s_lshl_b32 s61, s61, 4"); a(f"s_mul_i32 s62, s81, {RSTR}"); a("s_add_u32 s61, s61, s62"); a(f"s_add_u32 s61, s61, {RST}")
        a("s_mov_b64 exec, 1")
        a("buffer_store_dwordx4 v[36:39], v45, s[40:43], s61 offen sc1")
        a("s_mov_b64 exec, -1")
    stamp(3)
    a("s_cmp_eq_u32 s3, 3"); a("s_cbranch_scc1 L_ffn2")
    g.lab("L_rest")
    prio(0)
    if SP3:
        a("s_bitcmp1_b32 s2, 0"); a("s_cbranch_scc1 L_nsp"); a("s_cmp_lg_u32 s69, 3"); a("s_cbranch_scc1 L_nsp"); prio(1); g.lab("L_nsp")
    for i,t in enumerate(R[NEX:]):
        if SP3 and i==SP3: prio(0)
        sload(t)
    a("v_lshlrev_b32 v36, 5, v4"); a("v_lshl_add_u32 v36, v3, 4, v36")
    a(f"s_mul_i32 s61, s56, {LO_STR}"); a("v_add_u32 v41, s61, v36")
    a("v_and_b32 v37, 0x1f0, v2")
    a(f"s_mul_i32 s61, s56, {LY_STR}"); a("v_add_u32 v42, s61, v37")
    a("v_and_b32 v36, 7, v1"); a(f"v_mul_u32_u24 v40, {LO_STR}, v36"); a("v_lshl_add_u32 v40, v3, 4, v40"); a("s_lshl_b32 s61, s56, 6"); a("v_add_u32 v40, s61, v40")
    if STC: a("v_lshlrev_b32 v43, 2, v36")
    else: a("s_lshl_b32 s61, s59, 5"); a("v_lshl_add_u32 v43, v36, 2, s61")
    a("s_mul_i32 s76, s59, 2560"); a(f"s_mul_i32 s62, s81, {RSTR}"); a("s_add_u32 s76, s76, s62"); a(f"s_add_u32 s76, s76, {RY}")
    a("s_cmp_eq_u32 s3, 5"); a("s_cbranch_scc1 L_c1")
    a("s_cmp_eq_u32 s3, 2"); a("s_cbranch_scc1 L_s1")
    if YW:
        a("s_cmp_lg_u32 s56, 1"); a("s_cbranch_scc1 L_vphase")
        a("v_lshlrev_b32 v36, 6, v1"); a("s_mov_b32 exec_hi, 0xff")
        a("buffer_load_dword v10, v36, s[40:43], s76 offen%s"%(" sc1" if YW==1 else ""))
        a("s_mov_b32 exec_hi, -1")
    g.lab("L_vphase")
    beta=[0,2,1,3]
    def buildA(i):
        A=28+4*(i%2)
        for r in range(4):
            a(f"v_and_b32_dpp v{A+r}, v{14+i//4}, v{6+r} row_newbcast:{4*beta[i%4]} {DPPF}")
    buildA(0)
    for i in range(32):
        if i<31: buildA(i+1)
        g.wait(("V",i))
        A=28+4*(i%2)
        C="0" if i==0 else "v[24:27]"
        a(f"v_mfma_f32_16x16x32_bf16 v[24:27], {r4(A)}, {r4(SL(slot_of[('V',i)]))}, {C}")
    a("s_mov_b64 exec, 0xffffffff")
    a("s_nop 6")
    a(f"ds_write_b128 v41, v[24:27] offset:{LO}")
    a("s_mov_b64 exec, -1")
    stamp(4)
    a("s_cmp_eq_u32 s3, 2"); a("s_cbranch_scc1 L_w2stats")
    a("s_cmp_eq_u32 s3, 5"); a("s_cbranch_scc1 L_w3pre")
    g.lab("L_bar2")
    a("v_lshlrev_b32 v34, 4, v0")
    if YT:
        a("s_mul_i32 s61, s58, 40"); a("v_lshrrev_b32 v35, 2, v0"); a("v_add_u32 v35, s61, v35")
        a("v_lshrrev_b32 v31, 6, v35"); a("v_and_b32 v35, 63, v35"); a(f"v_mul_u32_u24 v35, {RSTR}, v35"); a("v_lshl_add_u32 v35, v31, 13, v35")
        a("v_and_b32 v31, 48, v34"); a("v_add_u32 v35, v35, v31")
        a("s_lshl_b32 s76, s57, 2"); a("s_add_u32 s76, s76, s59"); a("s_lshl_b32 s76, s76, 6"); a(f"s_add_u32 s76, s76, {RY}")
    def flagstore():
        a("s_cmp_lg_u32 s56, 7"); a("s_cbranch_scc1 L_nofl")
        if FPOS<2: a("s_mov_b64 exec, 1")
        a("buffer_store_dword v33, v32, s[40:43], s74 offen sc1")
        if FPOS<2: a("s_mov_b64 exec, -1")
        g.lab("L_nofl")
    if FIN>=2:
        a(f"v_mov_b32 v33, s{SN}"); a("v_lshlrev_b32 v32, 24, v1")
        a("s_lshl_b32 s74, s59, 7"); a(f"s_mul_i32 s62, s81, {RSTR}"); a("s_add_u32 s74, s74, s62"); a(f"s_add_u32 s74, s74, {RFL}")
        a("s_waitcnt vmcnt(0)")
    a("s_waitcnt lgkmcnt(0)")
    a("s_barrier")
    stamp(5)
    a(f"ds_read_b128 v[36:39], v40 offset:{LO}")
    a(f"ds_read_b32 v44, v43 offset:{LF}")
    if FIN>=2:
        if FPOS==0: flagstore()
        a("s_waitcnt lgkmcnt(0)")
    else: a("s_waitcnt vmcnt(0) lgkmcnt(0)")
    for k in range(4): a(f"v_mul_f32 v{36+k}, v44, v{36+k}")
    for ctrl in ("quad_perm:[1,0,3,2]","quad_perm:[2,3,0,1]","row_half_mirror"):
        for k in range(4): a(f"v_add_f32_dpp v{36+k}, v{36+k}, v{36+k} {ctrl} {DPPF}")
    for k in range(4): a(f"v_cvt_pk_bf16_f32 v{36+k}, v{36+k}, v{36+k}")
    vslots=sorted(slot_of[("V",i)] for i in range(32))
    YAs=vslots[0:5]; ABs=vslots[5:9]
    def AND(k,r): a(f"v_and_b32 v{SL(ABs[k])+r}, v{36+k}, v{6+r}")
    def M(cb,aa):
        C="0" if aa==0 else r4(SL(YAs[cb]))
        a(f"v_mfma_f32_16x16x32_bf16 {r4(SL(YAs[cb]))}, {r4(SL(ABs[aa]))}, {r4(SL(slot_of[('O',aa*5+cb)]))}, {C}")
    def W(cb): a(f"ds_write_b128 v42, {r4(SL(YAs[cb]))} offset:{LY+512*cb}")
    for r in range(4): AND(0,r)
    rest=[(k,r) for k in range(1,4) for r in range(4)]
    AND(*rest.pop(0)); AND(*rest.pop(0))
    for cb in range(5):
        M(cb,0)
        for _ in range(3 if cb<2 else 2):
            if rest: AND(*rest.pop(0))
    a("s_nop 0")
    for cb in range(5):
        if FIN>=2 and FPOS==2+cb: flagstore()
        for aa in range(1,4): M(cb,aa)
        if cb>=2: W(cb-2); a("s_nop 0")
        else: a("s_nop 1")
    a("s_nop 0"); W(3); a("s_nop 3"); W(4)
    if FIN>=2 and FPOS==1: flagstore()
    a("s_waitcnt lgkmcnt(0)")
    a("s_barrier")
    stamp(6)
    a("s_cmp_ge_u32 s56, 3"); a("s_cbranch_scc1 L_fin")
    a("v_cmp_gt_u32 vcc, 160, v0"); a("s_and_saveexec_b64 s[78:79], vcc")
    for w in range(8): a(f"ds_read_b128 {r4(SL(w))}, v34 offset:{LY+LY_STR*w}")
    a("s_waitcnt lgkmcnt(0)" if stamps else "s_waitcnt lgkmcnt(4)")
    pkadd(SL(0),SL(1)); pkadd(SL(2),SL(3)); pkadd(SL(0),SL(2))
    a("s_waitcnt lgkmcnt(0)")
    pkadd(SL(4),SL(5)); pkadd(SL(6),SL(7)); pkadd(SL(4),SL(6)); pkadd(SL(0),SL(4))
    jit(27,9,3)
    tag(SL(0))
    a(f"buffer_store_dwordx4 {r4(SL(0))}, v{35 if YT else 34}, s[40:43], s76 offen {['sc1','sc0 sc1','sc1 nt','sc0 sc1 nt'][PS]}")
    if stamps==3: stamp(3,3); a("s_waitcnt vmcnt(0)"); stamp(4,3)
    a("s_mov_b64 exec, -1")
    a("s_branch L_done")
    g.lab("L_fin")
    if HELP: a("s_cmp_eq_u32 s3, 6"); a("s_cbranch_scc1 L_help")
    a("s_cmp_lg_u32 s3, 5"); a("s_cbranch_scc1 L_done")
    a("s_mov_b32 s80, 0")
    srd(52,22,2560)
    if FIN==2:
        a("v_lshrrev_b32 v36, 2, v1"); a(f"v_mul_u32_u24 v36, {RSTR}, v36"); a("v_and_b32 v37, 3, v1"); a("v_lshl_add_u32 v36, v37, 7, v36")
        a("s_cmp_ge_u32 s83, 40"); a(f"s_cselect_b32 s61, {32*RSTR}, 0"); a(f"s_add_u32 s61, s61, {RFL}"); a(f"s_add_u32 s62, s61, {16*RSTR}")
        g.lab("L_fl_poll")
        a("buffer_load_dword v37, v36, s[40:43], s61 offen sc1")
        a("buffer_load_dword v38, v36, s[40:43], s62 offen sc1")
        a("s_waitcnt vmcnt(0)")
        a(f"v_cmp_ne_u32 vcc, s{SN}, v37"); a(f"v_cmp_ne_u32 s[78:79], s{SN}, v38"); a("s_or_b64 vcc, vcc, s[78:79]")
        a("s_cbranch_scc0 L_fl_ok")
        retry("L_fl_poll",FSL)
        g.lab("L_fl_ok")
        a("s_mov_b32 s80, 0")
        if FDEL: a(f"s_sleep {FDEL}")
    if FIN==3:
        a("v_lshlrev_b32 v36, 7, v1")
        a("s_cmp_ge_u32 s83, 40"); a("s_cselect_b32 s61, 16384, 0"); a(f"s_add_u32 s61, s61, {FL_OFF}"); a("s_add_u32 s62, s61, 8192")
        SO=[63,64,65,66,67,68,69,70]
        for i in range(1,8): a(f"s_add_u32 s{SO[i]}, s{SO[i-1]}, 40960")
        a("s_mov_b64 s[28:29], -1"); a("s_mov_b64 s[30:31], -1"); a("s_mov_b64 s[32:33], -1"); a("s_mov_b64 s[34:35], -1"); a("s_mov_b64 s[36:37], 0"); a("s_mov_b64 s[38:39], 0")
        a("s_mov_b32 s71, 0")
        g.lab("L_fl_poll")
        stamp(3,3)
        for i in range(8):
            a(f"s_bfe_u32 s72, s{28+i//2}, {(16<<16)|(16*(i%2)):#x}"); a(f"s_cbranch_scc1 L_fg{i}")
            a(f"buffer_load_dwordx4 {r4(SL(i))}, v45, s[40:43], s{SO[i]} offen sc1")
            a(f"s_bitset1_b32 s{36+i//2}, {16*(i%2)}"); a("s_add_u32 s71, s71, 1")
            g.lab(f"L_fg{i}")
        a("s_cmp_eq_u32 s71, 8"); a("s_cbranch_scc1 L_fin_chk")
        a("buffer_load_dword v37, v36, s[40:43], s61 offen sc1")
        a("buffer_load_dword v38, v36, s[40:43], s62 offen sc1")
        if FDEL:
            a("s_or_b64 s[28:29], s[32:33], s[36:37]"); a("s_or_b64 s[30:31], s[34:35], s[38:39]")
        a("s_waitcnt vmcnt(0)")
        a(f"v_cmp_ne_u32 s[32:33], s{SN}, v37"); a(f"v_cmp_ne_u32 s[34:35], s{SN}, v38")
        if not FDEL:
            a("s_or_b64 s[28:29], s[32:33], s[36:37]"); a("s_or_b64 s[30:31], s[34:35], s[38:39]")
        a("s_add_u32 s80, s80, 1"); a("s_cmp_lt_u32 s80, 0x10000"); a("s_cbranch_scc1 L_fl_poll")
    if FIN in (0,2,3):
        g.lab("L_fin_poll")
        stamp(3,3)
        a("s_mov_b32 s62, s63")
        for i in range(8):
            a(f"buffer_load_dwordx4 {r4(SL(i))}, v45, s[40:43], s62 offen {['sc1','sc0 sc1','sc1 nt','sc0 sc1 nt'][PL]}")
            if i<7: a(f"s_add_u32 s62, s62, {1024 if YT else 4*RSTR}")
        g.lab("L_fin_chk")
        if PIPE:
            for i in range(8):
                b=SL(i)
                a(f"s_waitcnt vmcnt({7-i})")
                for k in range(4): a(f"v_xor_b32 v{b+k}, s{T[k]}, v{b+k}")
                if i==0: a(f"v_or3_b32 v36, v{b}, v{b+1}, v{b+2}"); a(f"v_or_b32 v36, v36, v{b+3}")
                else:
                    a(f"v_or3_b32 v36, v36, v{b}, v{b+1}"); a(f"v_or3_b32 v36, v36, v{b+2}, v{b+3}")
                    pkadd(SL(0),b)
            a("v_and_b32 v36, 15, v36"); a("v_cmp_ne_u32 vcc, 0, v36"); a("s_cmp_eq_u64 vcc, 0")
        else:
            a("s_waitcnt vmcnt(0)")
            stamp(4,3)
            untag([SL(i) for i in range(8)],36)
        a("s_cbranch_scc1 L_fin_ok")
        retry("L_fin_poll",SLEEPF)
    else:
        MK=[28,30,32,34,36,38,4,6]
        SO=[63,64,65,66,67,68,69,70]
        for i in range(8):
            a(f"s_mov_b64 s[{MK[i]}:{MK[i]+1}], -1")
            if i: a(f"s_add_u32 s{SO[i]}, s{SO[i-1]}, 40960")
        g.lab("L_fin_poll")
        stamp(3,3)
        for i in range(8):
            a(f"s_mov_b64 exec, s[{MK[i]}:{MK[i]+1}]"); a(f"s_cbranch_execz L_fa{i}")
            a(f"buffer_load_dwordx4 {r4(SL(i))}, v45, s[40:43], s{SO[i]} offen sc1")
            g.lab(f"L_fa{i}")
        a("s_mov_b32 s61, 0")
        a("s_waitcnt vmcnt(0)")
        stamp(4,3)
        for i in range(8):
            b=SL(i)
            a(f"s_mov_b64 exec, s[{MK[i]}:{MK[i]+1}]"); a(f"s_cbranch_execz L_fb{i}")
            for k in range(4): a(f"v_xor_b32 v{b+k}, s{T[k]}, v{b+k}")
            a(f"v_or3_b32 v36, v{b}, v{b+1}, v{b+2}"); a(f"v_or_b32 v36, v36, v{b+3}"); a("v_and_b32 v36, 15, v36")
            a(f"v_cmp_ne_u32 s[{MK[i]}:{MK[i]+1}], 0, v36")
            a(f"s_bcnt1_i32_b64 s62, s[{MK[i]}:{MK[i]+1}]"); a("s_add_u32 s61, s61, s62")
            g.lab(f"L_fb{i}")
        a("s_mov_b64 exec, -1")
        a("s_cmp_eq_u32 s61, 0"); a("s_cbranch_scc1 L_fin_ok")
        if not DBG&1:
            a(f"s_cmp_lt_u32 s61, {4*FTH}"); a("s_cbranch_scc1 L_fc"); a(f"s_sleep {SLEEPG}")
            g.lab("L_fc")
            a("s_add_u32 s80, s80, 1"); a("s_cmp_lt_u32 s80, 0x10000"); a("s_cbranch_scc1 L_fin_poll")
    g.lab("L_fin_ok")
    if not PIPE:
        pkadd(SL(0),SL(1)); pkadd(SL(2),SL(3)); pkadd(SL(4),SL(5)); pkadd(SL(6),SL(7)); pkadd(SL(0),SL(2)); pkadd(SL(4),SL(6)); pkadd(SL(0),SL(4))
    scatter_reduce(SL(0),38,36,37)
    a("v_cvt_pk_bf16_f32 v38, v38, v38"); a("v_lshlrev_b32 v38, 16, v38"); a("v_add_f32 v38, v46, v38")
    a("v_cvt_pk_bf16_f32 v38, v38, v38"); a("v_lshlrev_b32 v38, 16, v38"); a("v_add_f32 v38, v47, v38")
    a("v_cvt_pk_bf16_f32 v38, v38, v38")
    a("s_mov_b64 exec, 0xffff")
    a("buffer_store_short v38, v23, s[52:55], 0 offen"+["", " sc1", " sc0 sc1", " nt"][OSC])
    a("s_cmp_lg_u32 s83, 40"); a("s_cbranch_scc1 L_noep")
    a("s_mov_b64 exec, 1")
    a(f"buffer_store_dword v33, v32, s[40:43], s101 offen sc1")
    g.lab("L_noep")
    a("s_mov_b64 exec, -1")
    g.lab("L_done")
    if PAD:
        g.lab("L_pad")
        a("s_memrealtime s[98:99]"); a("s_waitcnt lgkmcnt(0)"); a("s_sub_u32 s98, s98, s100"); a(f"s_cmp_lt_u32 s98, {PAD*100}"); a("s_cbranch_scc1 L_pad")
    if stamps:
        stamp(7)
        a("s_waitcnt lgkmcnt(0)")
        a(f"s_add_u32 s52, s26, {STAMP_OFF}"); a("s_addc_u32 s53, s27, 0"); a("s_mov_b32 s54, 0x100000"); a("s_mov_b32 s55, 0x20000")
        for k in range(8): a(f"v_mov_b32 v{48+k}, s{84+2*k}")
        if stamps==3: a("v_mov_b32 v49, s80")
        a("s_lshl_b32 s61, s2, 3"); a("s_add_u32 s61, s61, s56"); a("s_lshl_b32 s61, s61, 5")
        a("v_mov_b32 v36, 0"); a("s_mov_b64 exec, 1")
        a("buffer_store_dwordx4 v[48:51], v36, s[52:55], s61 offen"); a("buffer_store_dwordx4 v[52:55], v36, s[52:55], s61 offen offset:16")
    g.lab("L_end")
    a("s_endpgm")

    if HELP:
        g.lab("L_help")
        a("s_cmp_ge_u32 s83, 40"); a("s_cselect_b32 s61, 1, 0"); a("s_mul_i32 s62, s61, 40"); a("s_sub_u32 s62, s83, s62")
        a("s_mul_i32 s63, s61, 327680"); a("s_lshl_b32 s74, s62, 6"); a("s_add_u32 s63, s63, s74"); a(f"s_add_u32 s63, s63, {Y_OFF}"); a("s_add_u32 s64, s63, 163840")
        a("v_mul_u32_u24 v45, 2560, v1"); a("v_lshlrev_b32 v36, 7, v1")
        a("s_lshl_b32 s61, s61, 14"); a(f"s_add_u32 s61, s61, {FL_OFF}"); a("s_add_u32 s62, s61, 8192")
        for k in (28,30,32,34,36,38): a(f"s_mov_b64 s[{k}:{k+1}], 0")
        a("s_mov_b32 s80, 0")
        g.lab("L_hp")
        a("buffer_load_dword v37, v36, s[40:43], s61 offen sc1")
        a("buffer_load_dword v38, v36, s[40:43], s62 offen sc1")
        for h in range(2):
            a(f"s_mov_b64 exec, s[{28+2*h}:{29+2*h}]"); a(f"s_cbranch_execz L_hs{h}")
            a(f"buffer_load_dword v{39+h}, v45, s[40:43], s{63+h} offen sc1")
            g.lab(f"L_hs{h}")
            a(f"s_or_b64 s[{36+2*h}:{37+2*h}], s[{36+2*h}:{37+2*h}], s[{28+2*h}:{29+2*h}]")
            a(f"s_andn2_b64 s[{28+2*h}:{29+2*h}], s[{32+2*h}:{33+2*h}], s[{36+2*h}:{37+2*h}]")
        a("s_mov_b64 exec, -1")
        a("s_waitcnt vmcnt(0)")
        a(f"v_cmp_eq_u32 s[32:33], s{SN}, v37"); a(f"v_cmp_eq_u32 s[34:35], s{SN}, v38")
        a("s_and_b64 s[78:79], s[32:33], s[34:35]"); a("s_cmp_eq_u64 s[78:79], -1"); a("s_cbranch_scc1 L_done")
        a(f"s_sleep {HELP}")
        a("s_add_u32 s80, s80, 1"); a("s_cmp_lt_u32 s80, 0x4000"); a("s_cbranch_scc1 L_hp")
        a("s_branch L_done")

    g.lab("L_s1")
    if STC: a("v_and_b32 v44, 0x30, v2"); a("v_lshlrev_b32 v45, 1, v43")
    else: a("v_and_b32 v44, 0x1f0, v2"); a("v_lshrrev_b32 v45, 2, v44")
    a(f"s_mul_i32 s77, s81, {RSTR}"); a(f"s_add_u32 s77, s77, {RST}")
    a("buffer_load_dwordx4 v[10:13], v44, s[40:43], s77 offen sc1")
    a("s_branch L_vphase")
    g.lab("L_w2stats")
    prio(3)
    a("s_mov_b32 s80, 0")
    a("s_branch L_w2_chk")
    g.lab("L_w2_poll")
    a("buffer_load_dwordx4 v[10:13], v44, s[40:43], s77 offen sc1")
    g.lab("L_w2_chk")
    a("s_waitcnt vmcnt(0)")
    a(f"v_cmp_ne_u32 vcc, s{SN}, v12"); a(f"v_cmp_ne_u32 s[78:79], s{SN}, v13"); a("s_or_b64 vcc, vcc, s[78:79]")
    a("s_cbranch_scc0 L_w2_ok")
    retry("L_w2_poll",8)
    g.lab("L_w2_ok")
    if STC:
        a(f"ds_read_b32 v39, v45 offset:{LS}")
        a("v_mov_b32 v38, v10")
        for ctrl in ("quad_perm:[1,0,3,2]","quad_perm:[2,3,0,1]"): dpp("v_max_f32",38,ctrl)
        a("v_sub_f32 v36, v10, v38"); a("v_exp_f32 v36, v36"); a("s_nop 0"); a("v_mul_f32 v37, v36, v11")
        for ctrl in ("quad_perm:[1,0,3,2]","quad_perm:[2,3,0,1]"): dpp("v_add_f32",37,ctrl)
        a("v_rcp_f32 v37, v37")
        a("s_waitcnt lgkmcnt(0)")
        a("v_sub_f32 v36, v39, v38"); a("v_exp_f32 v36, v36"); a("s_nop 0"); a("v_mul_f32 v36, v36, v37")
        a(f"ds_write_b32 v43, v36 offset:{LF}")
    else:
        a("v_mov_b32 v38, v10")
        for ctrl in ("quad_perm:[1,0,3,2]","quad_perm:[2,3,0,1]","row_half_mirror","row_mirror"): dpp("v_max_f32",38,ctrl)
        xrow("v_max_f32",38,39,steps=(16,))
        a("v_sub_f32 v36, v10, v38"); a("v_exp_f32 v36, v36"); a("s_nop 0"); a("v_mul_f32 v37, v36, v11")
        for ctrl in ("quad_perm:[1,0,3,2]","quad_perm:[2,3,0,1]","row_half_mirror","row_mirror"): dpp("v_add_f32",37,ctrl)
        xrow("v_add_f32",37,39,steps=(16,))
        a("v_rcp_f32 v37, v37"); a("s_nop 0"); a("v_mul_f32 v36, v36, v37")
        a(f"ds_write_b32 v45, v36 offset:{LF}")
    a("s_branch L_bar2")

    g.lab("L_c1")
    a("s_cmp_ge_u32 s83, 40"); a("s_cselect_b32 s61, 1, 0"); a("s_mul_i32 s62, s61, 40"); a("s_sub_u32 s62, s83, s62")
    a(f"s_mul_i32 s63, s61, {RSTR*32}"); a("s_lshl_b32 s74, s62, 6"); a("s_add_u32 s63, s63, s74"); a(f"s_add_u32 s63, s63, {RY}")
    a("v_lshrrev_b32 v36, 2, v1"); a("v_and_b32 v37, 3, v1")
    a("v_and_b32 v45, 3, v36"); a("v_mul_u32_u24 v45, 2560, v45"); a(f"v_mul_u32_u24 v38, {RSTR}, v3"); a("v_add_u32 v45, v38, v45"); a("v_lshl_add_u32 v45, v37, 4, v45")
    if YT:
        a("v_mov_b32 v45, v2")
        a("s_and_b32 s63, s83, 63"); a(f"s_mul_i32 s63, s63, {RSTR}"); a("s_lshr_b32 s74, s83, 6"); a("s_lshl_b32 s74, s74, 13"); a("s_add_u32 s63, s63, s74"); a(f"s_add_u32 s63, s63, {RY}")
    a(f"v_mul_u32_u24 v44, {RSTR*2}, v36"); a("v_lshl_add_u32 v44, v37, 4, v44")
    a("s_lshr_b32 s75, s62, 3"); a("s_lshl_b32 s75, s75, 10"); a("s_lshl_b32 s74, s61, 9"); a("s_add_u32 s75, s75, s74"); a("s_and_b32 s74, s62, 7"); a("s_lshl_b32 s74, s74, 6"); a("s_add_u32 s75, s75, s74"); a(f"s_add_u32 s75, s75, {RF2}")
    a(f"s_add_u32 s77, s75, {32*RSTR}")
    a("v_and_b32 v38, 1, v36"); a("v_lshlrev_b32 v38, 1, v38"); a("v_bfe_u32 v39, v36, 1, 1"); a("v_or_b32 v38, v38, v39")
    a("v_lshl_add_u32 v38, v37, 3, v38"); a("v_lshlrev_b32 v38, 1, v38")
    a("s_mul_i32 s61, s61, 1280"); a("s_lshr_b32 s74, s62, 3"); a("s_lshl_b32 s74, s74, 8"); a("s_add_u32 s61, s61, s74")
    a("s_and_b32 s74, s62, 3"); a("s_lshl_b32 s74, s74, 6"); a("s_add_u32 s61, s61, s74")
    a("s_and_b32 s74, s62, 4"); a("s_lshl_b32 s74, s74, 1"); a("s_add_u32 s61, s61, s74"); a("v_add_u32 v23, s61, v38")
    srd(48,4,2560)
    a("buffer_load_ushort v46, v23, s[48:51], 0 offen")
    def f2loads():
        for k in range(4): a(f"v_mov_b32 v{36+k}, s{T[k]}")
        a("buffer_load_dwordx4 v[10:13], v44, s[40:43], s75 offen sc1")
        a("s_mov_b32 exec_hi, 0xfff")
        a("buffer_load_dwordx4 v[36:39], v44, s[40:43], s77 offen sc1")
        a("s_mov_b32 exec_hi, -1")
    f2loads()
    a("s_branch L_vphase")
    g.lab("L_w3pre")
    prio(3)
    a("s_mov_b32 s80, 0")
    a("s_branch L_w3_chk")
    g.lab("L_w3_poll")
    f2loads()
    g.lab("L_w3_chk")
    a("s_waitcnt vmcnt(0)")
    untag([10,36],28)
    a("s_cbranch_scc1 L_w3_ok")
    retry("L_w3_poll",16)
    g.lab("L_w3_ok")
    pkadd(10,36)
    scatter_reduce(10,47,28,29)
    a("v_cvt_pk_bf16_f32 v47, v47, v47"); a("v_lshlrev_b32 v47, 16, v47"); a("v_lshlrev_b32 v46, 16, v46")
    a("s_branch L_bar2")

    g.lab("L_unit2")
    masks(36,37)
    if UNEV: a("s_cmp_eq_u32 s70, 0"); a("s_cbranch_scc1 L_pref")
    a("s_cmp_lg_u32 s56, 5"); a("s_cbranch_scc1 L_unit3")
    a("s_mov_b32 s61, 0xffff0000")
    if UNEV: a("v_mov_b32 v14, 0"); a("v_lshlrev_b32 v15, 2, v1"); a(f"ds_write_b32 v15, v14 offset:{LX+2560}")
    a(f"s_waitcnt vmcnt({10 if ASYM else 8})")
    stamp(3,2)
    U=SL(12); X=24
    for k in range(10):
        a(f"v_lshlrev_b32 v{U+2*k}, 16, v{X+k}"); a(f"v_and_b32 v{U+2*k+1}, s61, v{X+k}")
    a(f"v_add_f32 v14, v{U}, v{U+1}"); a(f"v_add_f32 v15, v{U+2}, v{U+3}")
    for k in range(4,20,2):
        a(f"v_add_f32 v14, v14, v{U+k}"); a(f"v_add_f32 v15, v15, v{U+k+1}")
    a("v_add_f32 v14, v14, v15")
    def red32(v,t):
        for ctrl in ("quad_perm:[1,0,3,2]","quad_perm:[2,3,0,1]","row_half_mirror","row_mirror"): dpp("v_add_f32",v,ctrl)
        xrow("v_add_f32",v,t,steps=(16,))
    red32(14,15)
    a("s_mov_b32 s62, 0x3acccccd")
    a("v_mul_f32 v14, s62, v14")
    for k in range(20): a(f"v_sub_f32 v{U+20+k}, v{U+k}, v14")
    a(f"v_mul_f32 v16, v{U+20}, v{U+20}"); a(f"v_mul_f32 v17, v{U+21}, v{U+21}")
    for k in range(2,20,2):
        a(f"v_fmac_f32 v16, v{U+20+k}, v{U+20+k}"); a(f"v_fmac_f32 v17, v{U+21+k}, v{U+21+k}")
    a("v_add_f32 v16, v16, v17")
    red32(16,15)
    a("v_mul_f32 v16, s62, v16")
    a("v_cvt_pk_bf16_f32 v15, v14, v16"); a("v_lshlrev_b32 v14, 16, v15"); a("v_and_b32 v16, s61, v15")
    a("v_add_f32 v16, 0x3727c5ac, v16"); a("v_cvt_pk_bf16_f32 v16, v16, v16"); a("v_and_b32 v16, s61, v16")
    a("v_sqrt_f32 v16, v16"); a("s_nop 0"); a("v_cvt_pk_bf16_f32 v16, v16, v16"); a("v_and_b32 v16, s61, v16")
    a("v_rcp_f32 v16, v16")
    for k in range(20): a(f"v_sub_f32 v{U+k}, v{U+k}, v14")
    for k in range(10): a(f"v_cvt_pk_bf16_f32 v{X+k}, v{U+2*k}, v{U+2*k+1}")
    for k in range(10):
        a(f"v_lshlrev_b32 v{U+2*k}, 16, v{X+k}"); a(f"v_and_b32 v{U+2*k+1}, s61, v{X+k}")
    for k in range(20): a(f"v_mul_f32 v{U+k}, v{U+k}, v16")
    for k in range(10): a(f"v_cvt_pk_bf16_f32 v{X+k}, v{U+2*k}, v{U+2*k+1}")
    for k in range(10): a(f"v_min_u32 v{X+k}, -2, v{X+k}")
    for k in range(5): a(f"ds_write_b64 v12, v[{X+2*k}:{X+2*k+1}] offset:{LX+256*k}")
    stamp(4,2)
    g.lab("L_unit3")
    a("v_bfe_u32 v36, v1, 3, 1"); a("v_mul_u32_u24 v36, 1280, v36"); a("v_lshl_add_u32 v37, v22, 1, v36")
    a("s_mov_b32 s61, 0x01000100"); a("s_mov_b32 s62, 0x03020302")
    a("s_waitcnt vmcnt(0)")
    a("s_cmp_lg_u32 s56, 4"); a("s_cbranch_scc1 L_u2a")
    stamp(3,2)
    a("v_mov_b32 v21, 0")
    a("v_add_u32 v20, 1, v20"); a("v_and_b32 v20, 0x7fffffff, v20")
    a(f"ds_write_b32 v21, v20 offset:{LN_}")
    settags(20)
    g.lab("L_u2a")
    a("s_mov_b32 s80, 0")
    g.lab("L_u2x")
    for k in range(NU//2): a(f"ds_read_b32 v{14+k}, v37 offset:{LX+4*k}")
    a("s_waitcnt lgkmcnt(0)")
    ldsvalid([14+k for k in range(NU//2)],36)
    a("s_cbranch_scc1 L_u2b")
    retry("L_u2x",1,0x100000,lds=True)
    g.lab("L_u2b")
    def buildX(src,i):
        A=28+4*(i%2)
        a(f"v_perm_b32 v36, v{src+i//2}, v{src+i//2}, s{61+i%2}")
        for r in range(4): a(f"v_and_b32 v{A+r}, v36, v{6+r}")
    buildX(14,0)
    for i in range(NU):
        if i==8 and not ASYM: a("s_cmp_eq_u32 s70, 8"); a("s_cbranch_scc1 L_u8")
        if UNEV and i in (10,12): a(f"s_cmp_eq_u32 s70, {i}"); a("s_cbranch_scc1 L_u8")
        if i<NU-1: buildX(14,i+1)
        else: a("s_nop 0")
        C="0" if i==0 else "v[40:43]"
        a(f"v_mfma_f32_16x16x32_bf16 v[40:43], {r4(28+4*(i%2))}, {r4(SL(32+i))}, {C}")
    g.lab("L_u8")
    a("s_cmp_eq_u32 s56, 4"); a("s_cbranch_scc1 L_u2c")
    a("s_nop 5")
    for k in range(4): a(f"v_min_u32 v{40+k}, -2, v{40+k}")
    a(f"ds_write_b128 v13, v[40:43] offset:{LU}")
    a("s_branch L_pref")
    g.lab("L_u2c")
    a("s_nop 3")
    a("s_mov_b32 s80, 0")
    g.lab("L_u2w")
    for k in range(3): a(f"ds_read_b128 {r4(28+4*k)}, v2 offset:{LU+1024*(k+1)}")
    a("s_waitcnt lgkmcnt(0)")
    ldsvalid(list(range(28,40)),44)
    a("s_cbranch_scc1 L_u2ok")
    retry("L_u2w",1,0x100000,lds=True)
    g.lab("L_u2ok")
    pkadd(40,28); pkadd(32,36); pkadd(40,32)
    stamp(4,2)
    jit(13,5,6)
    tag(40)
    a("buffer_store_dwordx4 v[40:43], v2, s[40:43], s75 offen sc1")
    a("s_branch L_pref")

    g.lab("L_poller")
    prio(3)
    stamp(3,2)
    a("s_cmp_ge_i32 s66, 0"); a("s_cbranch_scc1 L_pn")
    a(f"s_waitcnt vmcnt({32-RPOS})")
    a("v_add_u32 v20, 1, v20"); a("v_and_b32 v20, 0x7fffffff, v20")
    a(f"ds_write_b32 v21, v20 offset:{LN_}")
    g.lab("L_pn")
    a("s_mov_b32 s80, 0")
    g.lab("L_pn2")
    a(f"ds_read_b32 v20, v21 offset:{LN_}")
    a("s_waitcnt lgkmcnt(0)")
    a("v_cmp_eq_u32 vcc, -1, v20"); a("s_cmp_eq_u64 vcc, 0"); a("s_cbranch_scc1 L_pn3")
    retry("L_pn2",2,0x100000,lds=True)
    g.lab("L_pn3")
    settags(20)
    stamp(5,2)
    a("v_lshrrev_b32 v18, 5, v1"); a("v_lshlrev_b32 v18, 10, v18"); a("v_and_b32 v19, 0x1f0, v2"); a("v_add_u32 v18, v18, v19")
    a("v_and_b32 v19, 1, v3"); a("v_lshlrev_b32 v19, 3, v19"); a("v_lshl_add_u32 v19, v4, 4, v19")
    a(f"s_mul_i32 s61, s57, {RSTR}"); a("s_lshl_b32 s62, s58, 9"); a("s_add_u32 s61, s61, s62")
    a("s_mov_b32 s80, 0")
    g.lab("L_w0_poll")
    a("buffer_load_dwordx4 v[28:31], v18, s[40:43], s61 offen sc1")
    a("buffer_load_dwordx4 v[32:35], v18, s[40:43], s61 offen offset:2048 sc1")
    a("s_waitcnt vmcnt(0)")
    untag([28,32],16)
    a("s_cbranch_scc1 L_w0_ok")
    retry("L_w0_poll",SLEEP2)
    g.lab("L_w0_ok")
    stamp(6,2)
    pkadd(28,32)
    for k in range(4): a(f"v_mov_b32 v{32+k}, v{28+k}")
    a("s_nop 0")
    for k in range(4): a(f"v_permlane32_swap_b32 v{28+k}, v{32+k}")
    pkadd(28,32)
    a("v_cvt_pk_bf16_f32 v28, v28, v29"); a("v_cvt_pk_bf16_f32 v29, v30, v31")
    a("v_min_u32 v28, -2, v28"); a("v_min_u32 v29, -2, v29")
    a(f"ds_write_b64 v19, v[28:29] offset:{LQ}")
    a("s_branch L_extras")

    g.lab("L_wdown")
    srd(52,20,1728*640*2)
    a("s_mul_i32 s77, s83, 205"); a("s_lshr_b32 s77, s77, 10")
    a("s_mul_i32 s62, s77, 5"); a("s_sub_u32 s62, s83, s62"); a("s_lshl_b32 s62, s62, 8")
    a("s_mul_i32 s61, s77, 81920"); a("s_add_u32 s61, s61, s62")
    a("v_mul_u32_u24 v39, 20480, v3"); a("v_lshl_add_u32 v39, v4, 4, v39")
    for t in range(16):
        a(f"buffer_load_dwordx4 {r4(SL(32+t))}, v39, s[52:55], s61 offen offset:{(t%4)*1280}{wnt}")
        a("s_add_u32 s61, s61, 5120" if t%4==3 else "s_nop 0")
    if WDE:
        a("s_branch L_wdret")
        g.lab("L_f1e")
    if F1E:
        a("s_add_u32 s61, s77, 32"); a(f"s_mul_i32 s61, s61, {RSTR}")
        for k in range(4): a(f"buffer_load_dwordx4 {r4(SL(48+k))}, v2, s[40:43], s61 offen offset:{1024*k} sc1"); a("s_nop 0")
    if WDE: a(f"s_waitcnt vmcnt({4 if F1E else 0})")
    a("s_branch L_qw")
    g.lab("L_ffn2")
    GA=SL(48) if F1E else SL(0); GB=SL(4); GG=SL(5); GU=SL(6); TA=SL(7); TB=SL(7)+1; HC=SL(8)
    a("s_add_u32 s61, s77, 32"); a(f"s_mul_i32 s61, s61, {RSTR}")
    a("s_mov_b32 s80, 0")
    if F1E: a("s_branch L_w1_chk")
    g.lab("L_w1_poll")
    for k in range(4): a(f"buffer_load_dwordx4 {r4(GA+4*k)}, v2, s[40:43], s61 offen offset:{1024*k} sc1")
    g.lab("L_w1_chk")
    a("s_waitcnt vmcnt(0)")
    untag([GA+4*k for k in range(4)],TB)
    a("s_cbranch_scc1 L_w1_ok")
    retry("L_w1_poll",SLEEP2)
    g.lab("L_w1_ok")
    stamp(6,2)
    pkadd(GA,GA+4); pkadd(GA+8,GA+12); pkadd(GA,GA+8)
    a(f"v_and_b32 v{TB}, 8, v1"); a(f"v_cmp_eq_u32 vcc, 0, v{TB}")
    a("s_mov_b32 s61, 0xffff0000")
    for k in range(4): a(f"v_mov_b32_dpp v{GB+k}, v{GA+k} row_ror:8 {DPPF}")
    for k in range(4):
        a(f"v_cndmask_b32 v{GG+k}, v{GB+k}, v{GA+k}, vcc"); a(f"v_cndmask_b32 v{GU+k}, v{GA+k}, v{GB+k}, vcc")
    a("s_mov_b32 s62, 0x3d372713")
    a("s_mov_b32 s74, 0xc0135761")
    for k in range(4):
        gk=GG+k; uk=GU+k
        a(f"v_cvt_pk_bf16_f32 v{TA}, v{gk}, v{uk}"); a(f"v_lshlrev_b32 v{gk}, 16, v{TA}"); a(f"v_and_b32 v{uk}, s61, v{TA}")
        a(f"v_mul_f32 v{TB}, v{gk}, v{gk}"); a(f"v_mul_f32 v{TB}, s62, v{TB}"); a(f"v_fma_f32 v{TB}, v{TB}, v{gk}, v{gk}")
        a(f"v_mul_f32 v{TB}, s74, v{TB}"); a(f"v_exp_f32 v{TB}, v{TB}"); a("s_nop 0"); a(f"v_add_f32 v{TB}, 1.0, v{TB}"); a(f"v_rcp_f32 v{TB}, v{TB}"); a("s_nop 0")
        a(f"v_mul_f32 v{TB}, v{gk}, v{TB}"); a(f"v_cvt_pk_bf16_f32 v{TB}, v{TB}, v{TB}"); a(f"v_and_b32 v{TB}, s61, v{TB}")
        a(f"v_mul_f32 v{gk}, v{TB}, v{uk}")
    a(f"v_cvt_pk_bf16_f32 v{GU}, v{GG}, v{GG+1}"); a(f"v_cvt_pk_bf16_f32 v{GU+1}, v{GG+2}, v{GG+3}")
    a(f"v_lshrrev_b32 v{TA}, 1, v3"); a(f"v_lshlrev_b32 v{TA}, 7, v{TA}"); a(f"v_and_b32 v{TB}, 7, v1"); a(f"v_lshl_add_u32 v{TA}, v{TB}, 4, v{TA}"); a(f"v_and_b32 v{TB}, 1, v3"); a(f"v_lshl_add_u32 v{TA}, v{TB}, 3, v{TA}")
    a(f"ds_write_b64 v{TA}, v[{GU}:{GU+1}] offset:{LH}")
    a(f"v_bfe_u32 v{TB}, v1, 3, 1"); a(f"v_lshlrev_b32 v{TB}, 7, v{TB}"); a(f"v_lshl_add_u32 v{TB}, v3, 5, v{TB}")
    a(f"ds_read_b128 {r4(HC)}, v{TB} offset:{LH}"); a(f"ds_read_b128 {r4(HC+4)}, v{TB} offset:{LH+16}")
    a("s_mov_b32 s61, 0x01000100"); a("s_mov_b32 s62, 0x03020302")
    a("s_waitcnt lgkmcnt(0)")
    buildX(HC,0)
    for i in range(16):
        if i<15: buildX(HC,i+1)
        else: a("s_nop 0")
        C="0" if i==0 else "v[40:43]"
        a(f"v_mfma_f32_16x16x32_bf16 v[40:43], {r4(28+4*(i%2))}, {r4(SL(32+i))}, {C}")
    a("s_mul_i32 s62, s77, 5"); a("s_sub_u32 s62, s83, s62"); a("s_lshl_b32 s62, s62, 10"); a(f"s_mul_i32 s61, s77, {RSTR*2}"); a("s_add_u32 s61, s61, s62"); a(f"s_add_u32 s61, s61, {RF2}")
    a("s_nop 5")
    jit(22,18,10)
    tag(40)
    a("buffer_store_dwordx4 v[40:43], v2, s[40:43], s61 offen sc1")
    a("s_mov_b32 s3, 4")
    prio(1)
    a("s_branch L_exl")

    g.lab("L_code_end")
    o.append('.section .rodata,"a"'); o.append(".p2align 6"); o.append(f".amdhsa_kernel {NAME}")
    for x in ["next_free_vgpr 256","next_free_sgpr 102","accum_offset 256","group_segment_fixed_size 0","kernarg_size 96","user_sgpr_count 2","user_sgpr_kernarg_segment_ptr 1","system_sgpr_workgroup_id_x 1","float_denorm_mode_32 3"]:
        o.append("  .amdhsa_"+x)
    o.append(".end_amdhsa_kernel")
    return "\n".join(o)+"\n"

if __name__=="__main__":
    import argparse
    ap=argparse.ArgumentParser(); ap.add_argument("out"); ap.add_argument("kw",nargs="*")
    ar=ap.parse_args()
    kw={}
    for x in ar.kw:
        k,v=x.split("="); kw[k]=int(v) if v.lstrip("-").isdigit() else v
    open(ar.out,"w").write(gen(**kw))
```
